```python
import torch

def _softmax(x, axis=-1):
    return torch.softmax(x, dim=axis)
def _gelu(x):
    return torch.nn.functional.gelu(x, approximate="tanh")
def _silu(x):
    return torch.nn.functional.silu(x)
def _sigmoid(x):
    return torch.sigmoid(x)
def _layernorm(x, axis=-1, eps=1e-5):
    m = x.mean(dim=axis, keepdim=True)
    v = x.var(dim=axis, keepdim=True, unbiased=False)
    return (x - m) / torch.sqrt(v + eps)
def _scatter_add(tgt, idx, src, axis=0):
    return tgt.clone().index_add_(axis, idx, src)
def _segment_sum(src, seg, n):
    out = torch.zeros((n,) + src.shape[1:], dtype=src.dtype)
    return out.index_add_(0, seg, src)
def _pad(x, pw):
    flat = tuple(v for pair in reversed(pw) for v in pair)
    return torch.nn.functional.pad(x, flat)

kernel_name = 'gated_mix__ssm_conv_s4d__moe_arch_mod__prompt'

def setup_inputs():

    _w = (lambda a: (lambda t: t.to(torch.bfloat16) if t.is_floating_point() else t)(torch.as_tensor(a)))
    def _A_setup():
        Bsz, L, D, N = 1, 2048, 1024, 128
        return {
            "u": _w((lambda *s: torch.randn(*s, dtype=torch.bfloat16) * 0.05)(Bsz, L, D)),
            "log_A_real": _w((lambda *s: torch.randn(*s, dtype=torch.bfloat16) * 6.4)(D, N) * 0.5),
            "A_imag": _w((lambda *s: torch.randn(*s, dtype=torch.bfloat16) * 0.1)(D, N) * 3.14),
            "C_real": _w((lambda *s: torch.randn(*s, dtype=torch.bfloat16) * 0.4)(D, N) / N ** 0.5),
            "C_imag": _w((lambda *s: torch.randn(*s, dtype=torch.bfloat16) * 0.4)(D, N) / N ** 0.5),
            "log_dt": _w((lambda *s: torch.randn(*s, dtype=torch.bfloat16) * 0.1)(D) * 0.5 - 4.0),
            "D_skip": _w((lambda *s: torch.randn(*s, dtype=torch.bfloat16) * 0.1)(D)),
        }
    _A_in = _A_setup()

    def _B_setup():
        B, S, D, F, C = 1, 2048, 1024, 3584, 8
        return {
            "x": _w((lambda *s: torch.randn(*s, dtype=torch.bfloat16) * 0.05)(B, S, D)),
            "w_r": _w((lambda *s: torch.randn(*s, dtype=torch.bfloat16) * 6.4)(D)),
            "w_gate": _w((lambda *s: torch.randn(*s, dtype=torch.bfloat16) * 0.1)(D, F)),
            "w_up": _w((lambda *s: torch.randn(*s, dtype=torch.bfloat16) * 0.1)(D, F)),
            "w_down": _w((lambda *s: torch.randn(*s, dtype=torch.bfloat16) * 0.1)(F, D)),
        }
    _B_in = _B_setup()

    return {
        "A_u": _A_in["u"],
        "A_log_A_real": _A_in["log_A_real"],
        "A_A_imag": _A_in["A_imag"],
        "A_C_real": _A_in["C_real"],
        "A_C_imag": _A_in["C_imag"],
        "A_log_dt": _A_in["log_dt"],
        "A_D_skip": _A_in["D_skip"],
        "B_x": _B_in["x"],
        "B_w_r": _B_in["w_r"],
        "B_w_gate": _B_in["w_gate"],
        "B_w_up": _B_in["w_up"],
        "B_w_down": _B_in["w_down"],
        "gate_w": _w((lambda *s: torch.randn(*s, dtype=torch.bfloat16) * 0.05)(1024) * 16.0),
    }

def reference(A_u, A_log_A_real, A_A_imag, A_C_real, A_C_imag, A_log_dt, A_D_skip, B_x, B_w_r, B_w_gate, B_w_up, B_w_down, gate_w):
    def _A_ref(u, log_A_real, A_imag, C_real, C_imag, log_dt, D_skip):
        L = u.shape[1]
        dt = torch.exp(log_dt)
        A = -torch.exp(log_A_real) + 1j * A_imag
        C = (C_real + 1j * C_imag) * dt[:, None]
        pos = (lambda x, dt: x.to(dt))(torch.arange(L), log_dt.dtype)
        P = torch.exp((A * dt[:, None])[:, :, None] * pos[None, None, :])
        K = 2.0 * torch.einsum("dn,dnl->dl", C, P).real
        L2 = 2 * L
        u_t = (lambda x, *d: x.permute(*d))(u, 0, 2, 1)
        Kf = (lambda x, *a, **k: torch.fft.rfft(x.float(), *a, **k))(K, L2)
        Uf = (lambda x, *a, **k: torch.fft.rfft(x.float(), *a, **k))(u_t, L2)
        y = (lambda x, *a, **k: torch.fft.irfft(x, *a, **k).to(torch.bfloat16))(Uf * Kf[None, :, :], L2)[:, :, :L]
        y = (lambda x, *d: x.permute(*d))(y, 0, 2, 1)
        return y + u * D_skip[None, None, :]

    def _B_ref(x, w_r, w_gate, w_up, w_down):
        B, S, D = x.shape
        C = 8
        r = x @ w_r
        idx = torch.argsort(-r, axis=-1)[:, :C]
        idx_e = (lambda x, n, axis: torch.repeat_interleave(x, n, dim=axis))(idx.reshape(B, C, 1), D, axis=2)
        x_sel = (lambda x, i, axis: torch.take_along_dim(x, i, dim=axis))(x, idx_e, axis=1)
        g = _silu(x_sel @ w_gate)
        u = x_sel @ w_up
        y = (g * u) @ w_down
        r_sel = _sigmoid((lambda x, i, axis: torch.take_along_dim(x, i, dim=axis))(r, idx, axis=1))
        y = y * r_sel.reshape(B, C, 1)
        b_off = (torch.arange(B) * S).reshape(B, 1)
        flat_idx = (idx + b_off).reshape(B * C)
        zero = (x * 0.0).reshape(B * S, D)
        upd = _scatter_add(zero, flat_idx, y.reshape(B * C, D), axis=0)
        return x + upd.reshape(B, S, D)

    x = A_u
    g = _sigmoid((x * gate_w).sum(-1, keepdims=True))
    a = _A_ref(x, A_log_A_real, A_A_imag, A_C_real, A_C_imag, A_log_dt, A_D_skip)
    b = _B_ref(x, B_w_r, B_w_gate, B_w_up, B_w_down)
    return g * a + (1 - g) * b
```

```python
KNAME = 'gated_mix__ssm_conv_s4d__moe_arch_mod__prompt_kernel'
class A:
    def __init__(self):
        self.l = []
        self.nlab = 0
    def __call__(self, s):
        for ln in s.strip('\n').split('\n'):
            ln = ln.strip()
            if ln: self.l.append(('' if ln.endswith(':') else '    ') + ln)
    def lab(self, p='L'):
        self.nlab += 1
        return f'{p}_{self.nlab}'
    def text(self): return '\n'.join(self.l) + '\n'

def kernel_text(name, body, vgpr, sgpr=102, accum=None, extra=''):
    accum = accum or ((vgpr + 3) // 4 * 4)
    return (f""".text
.globl {name}
.p2align 8
.type {name},@function
{name}:
{body}
""", f""".section .rodata,"a"
.p2align 6
.amdhsa_kernel {name}
  .amdhsa_next_free_vgpr {vgpr}
  .amdhsa_next_free_sgpr {sgpr}
  .amdhsa_accum_offset {accum}
  .amdhsa_group_segment_fixed_size 0
  .amdhsa_kernarg_size 128
  .amdhsa_user_sgpr_count 2
  .amdhsa_user_sgpr_kernarg_segment_ptr 1
  .amdhsa_system_sgpr_workgroup_id_x 1
{extra}.end_amdhsa_kernel
""")

def file_text(launch_lines, kernels):
    s = ''.join(f'; {x}\n' for x in launch_lines)
    s += '.amdgcn_target "amdgcn-amd-amdhsa--gfx950"\n'
    s += ''.join(k[0] for k in kernels)
    s += ''.join(k[1] for k in kernels)
    return s
```

```python
import re
TRANS = ('v_exp_f32', 'v_log_f32', 'v_rcp_f32', 'v_rsq_f32', 'v_sqrt_f32', 'v_sin_f32', 'v_cos_f32')
def regs(tok):
    tok = tok.strip()
    tok = re.sub(r'^-|^abs\(|\)$|^\|', '', tok).rstrip('|')
    m = re.fullmatch(r'([vsa])(\d+)', tok)
    if m: return {(m.group(1), int(m.group(2)))}
    m = re.fullmatch(r'([vsa])\[(\d+):(\d+)\]', tok)
    if m: return {(m.group(1), i) for i in range(int(m.group(2)), int(m.group(3)) + 1)}
    if tok == 'vcc': return {('s', 106), ('s', 107)}
    if tok == 'vcc_lo': return {('s', 106)}
    if tok == 'vcc_hi': return {('s', 107)}
    if tok == 'm0': return {('s', 124)}
    if tok == 'exec': return {('s', 126), ('s', 127)}
    return set()
class I:
    def __init__(self, line):
        self.line = line
        s = line.split(';')[0].strip()
        self.label = s.endswith(':')
        self.dir = s.startswith('.')
        self.op = s.split()[0] if s else ''
        rest = s[len(self.op):].strip()
        ops = []; depth = 0; cur = ''
        for ch in rest:
            if ch == '[': depth += 1
            if ch == ']': depth -= 1
            if ch == ',' and depth == 0: ops.append(cur); cur = ''
            else: cur += ch
        if cur.strip(): ops.append(cur)
        last = ops[-1].strip().split() if ops else []
        self.mods = ' '.join(last[1:]) if last else ''
        if ops: ops[-1] = last[0] if last else ''
        self.ops = [o.strip() for o in ops]
        op = self.op
        self.mfma = op.startswith('v_mfma')
        self.valu = op.startswith('v_') and not self.mfma
        self.ds = op.startswith('ds_')
        self.vmem = op.startswith(('buffer_', 'global_'))
        self.salu = op.startswith('s_')
        self.trans = op.replace('_e32', '').replace('_e64', '') in TRANS
        self.dot = op.startswith('v_dot')
        self.dpp = '_dpp' in op
        self.perml = op.startswith('v_permlane')
        self.rdlane = op.startswith(('v_readlane', 'v_readfirstlane'))
        R = [regs(o) for o in self.ops]
        w = set(); r = set(); self.srcc = set(); self.ab = set(); self.sdata = set(); self.lanesel = set()
        U = lambda L: set().union(*L) if L else set()
        if self.mfma:
            w = R[0]; self.ab = R[1] | R[2]; self.srcc = R[3]; r = self.ab | self.srcc
        elif self.valu:
            if op.startswith(('v_swap', 'v_permlane')): w = R[0] | R[1]; r = set(w)
            elif re.match(r'v_(add|sub|subrev|addc|subb)_co', op): w = R[0] | R[1]; r = U(R[2:])
            else:
                w = R[0]; r = U(R[1:])
                if op.startswith(('v_fmac', 'v_dot2c', 'v_writelane')) or self.dpp: r |= R[0]
                if op.startswith('v_cmpx'): w |= regs('exec')
            if op.startswith(('v_readlane', 'v_writelane')): self.lanesel = R[2]
        elif self.ds:
            if op.startswith(('ds_read', 'ds_bpermute', 'ds_permute', 'ds_swizzle')) or '_rtn' in op: w = R[0]; r = U(R[1:])
            else: r = U(R)
        elif self.vmem:
            lds = ' lds' in ' ' + self.mods or op.startswith('global_load_lds')
            self.ldsdma = lds
            if 'load' in op and not lds: w = R[0]; r = U(R[1:])
            else:
                r = U(R)
                if op.endswith(('x3', 'x4')) and 'store' in op: self.sdata = R[0] if op.startswith('buffer') else R[1]
            if lds: r |= regs('m0')
        elif self.salu:
            if op.startswith(('s_cmp', 's_cbranch', 's_branch', 's_waitcnt', 's_nop', 's_sleep', 's_barrier', 's_setprio', 's_endpgm', 's_bitcmp')): r = U(R)
            else:
                w = R[0] if R else set(); r = U(R[1:])
        self.w = w; self.r = r
        self.slots = (int(self.ops[0]) + 1) if op == 's_nop' else (0 if (self.label or self.dir or not op) else 1)
        self.passes = 8 if '32x32x16' in op else 4
def need(p, c):
    n = 0
    V = lambda S: {x for x in S if x[0] in 'va'}
    S = lambda X: {x for x in X if x[0] == 's'}
    if p.valu:
        vw = V(p.w); sw = S(p.w)
        if vw:
            if c.dpp and vw & c.r: n = max(n, 2)
            if c.perml and vw & c.r: n = max(n, 2)
            if c.rdlane and vw & c.r: n = max(n, 1)
            if c.mfma and vw & c.r: n = max(n, 2)
            if p.trans and c.valu and not c.trans and vw & c.r: n = max(n, 1)
            if p.dot and (c.valu or c.mfma or c.ds or c.vmem) and (vw & (c.r | c.w)):
                same = c.op == p.op and not (vw & (regs(c.ops[1]) | regs(c.ops[2])))
                if not same: n = max(n, 3)
            if ('sdwa' in p.op or 'op_sel:' in p.mods) and not p.op.startswith('v_pk') and c.valu and vw & (c.r | c.w): n = max(n, 1)
        if sw:
            if c.vmem and sw & c.r: n = max(n, 5)
            if c.valu and sw & c.lanesel: n = max(n, 4)
            if c.valu and sw & c.r: n = max(n, 2)
            if sw & regs('exec'):
                if c.dpp: n = max(n, 5)
                if c.rdlane or c.perml or c.mfma or c.op.startswith('v_writelane'): n = max(n, 4)
    if p.mfma:
        t = {4: (6, 8, 3), 8: (10, 12, 7)}[p.passes]
        if c.mfma:
            if p.w & c.ab: n = max(n, t[1])
            if p.w & c.srcc and p.w != c.srcc: n = max(n, t[0])
            if p.w & c.w and not (p.w & c.srcc): n = max(n, t[1])
        elif c.valu or c.ds or c.vmem:
            if p.w & (c.r | c.w): n = max(n, t[1])
            if c.valu and p.srcc & c.w: n = max(n, t[2])
    if p.vmem and p.sdata and (p.sdata & c.w): n = max(n, 2 if c.valu else 1)
    if p.salu and regs('m0') & p.w and c.vmem and getattr(c, 'ldsdma', False): n = max(n, 1)
    return n
def fix(lines, verbose=False):
    ins = [I(l) for l in lines]
    out = []
    added = 0
    def hist_need(hist, c):
        d = 0; n = 0
        for p in reversed(hist):
            if d >= 12: break
            if p.op in ('s_branch', 's_endpgm') and p is not hist[-1] and False: break
            n = max(n, need(p, c) - d)
            d += p.slots
        return n
    for c in ins:
        if c.slots:
            h = []
            for p in reversed(out):
                if p.op in ('s_branch', 's_endpgm'): break
                h.append(p)
                if len(h) > 40: break
            n = hist_need(h[::-1], c)
            if n > 0:
                out.append(I(f'    s_nop {n-1}')); added += 1
                if verbose: print('nop', n, 'before', c.line.strip())
        out.append(c)
    lab = {x.op[:-1]: i for i, x in enumerate(out) if x.label}
    for i, b in enumerate(out):
        if b.op.startswith(('s_cbranch', 's_branch')) and b.ops[0] in lab:
            h = out[max(0, i - 40):i + 1]
            for c in out[lab[b.ops[0]]:lab[b.ops[0]] + 14]:
                if c.slots:
                    n = hist_need(h, c)
                    assert n <= 0, f'hazard across branch {b.line.strip()} -> {c.line.strip()} needs {n}'
                    h = h + [c]
                    if c.op in ('s_branch', 's_endpgm'): break
    return [x.line for x in out]
```

```python
import sys
from asmlib import *
import hazard

WS_RT, WS_GT, WS_H2, WS_H3, WS_UT, WS_ST, WS_DBG = 0x1000, 0x3000, 0x10000, 0x100000, 0x400000, 0x900000, 0xA00000
F_ROWS, F_GPUB, F_UT, F_PASS, F_TK, F_XS, F_P, F_H, L_TAG = 0, 4, 8, 12, 16, 20, 24, 28, 32
L_GM, L_LIST, L_SEL = 64, 128, 256
L_G = 1024
L_KR = 5120;  KR_W = 16640; KCP = 4160
L_UT = L_KR + 4 * KR_W; UT_W = 4672; UT_PAD = 480
L_AS = L_UT + 4 * UT_W; AS_W = 4160; ROW_W = 2112
L_XS = L_AS + 8 * ROW_W; XS_W = 1056
L_P = L_XS + 8 * XS_W; P_T = 272; P_W = 8 * P_T
L_HS = L_P + 4 * P_W; HS_W = 160
LDS_BYTES = L_HS + 8 * HS_W
SCR_W = 544
L_TAB = 8704
TAGC = 0x9E3779B9
LOG2E = 0x3FB8AA3B
SPIN = 1 << 15

DEF = dict(stamps=False, dbg=False, rownt='nt', wnt='nt', th=10, sdelay=16, edelay=0, passes=((0, 1), (2, 3, 4), (5, 6, 7)),
           look=6, w2early=True)

def gen(**kw):
    o = dict(DEF); o.update(kw)
    a = A()
    vZ, vOne = 3, 2
    nst = [0]
    def stamp(i):
        if o['stamps']: a(f"s_memrealtime s[{64+2*i}:{65+2*i}]\ns_waitcnt lgkmcnt(0)")
    def dump_stamps(role):
        if not o['stamps']: return
        a("s_mov_b64 exec, -1\ns_waitcnt vmcnt(0) lgkmcnt(0)")
        stamp(15)
        if o.get('calib'):
            if o['calib'][0] == role:
                L = a.lab('CAL')
                a(f"""
                s_sub_u32 s40, s{64+2*o['calib'][1]}, s64
                s_cmp_eq_u32 s{64+2*o['calib'][1]}, 0
                s_cselect_b32 s40, 0, s40
                s_mul_i32 s40, s40, 10
                s_add_u32 s40, s40, 10000
                {'s_sleep 127' + chr(10) + 'buffer_wbl2 sc1' + chr(10) + 's_waitcnt vmcnt(0)' if o.get('wb') else ''}
                {L}:
                s_sleep 4
                s_memrealtime s[42:43]
                s_waitcnt lgkmcnt(0)
                s_sub_u32 s42, s42, s64
                s_cmp_lt_u32 s42, s40
                s_cbranch_scc1 {L}
                """)
            return
        for i in range(16): a(f"v_writelane_b32 v4, s{64+2*i}, {i}")
        a(f"""
        s_mul_i32 s40, s2, 12
        s_add_u32 s40, s40, s3
        s_lshl_b32 s40, s40, 6
        s_add_u32 s40, s40, {WS_ST}
        v_lshlrev_b32 v5, 2, v1
        s_mov_b64 exec, 0xffff
        buffer_store_dword v4, v5, s[8:11], s40 offen
        """)
    def signal(f):
        a(f"s_mov_b64 exec, 1\nds_add_u32 v{vZ}, v{vOne} offset:{f}\ns_mov_b64 exec, -1")
    def lwait(f, n, vt, extra='', sleep=1, sc='s62'):
        L = a.lab('W'); D = a.lab('WD')
        a(f"""
        s_mov_b32 {sc}, 0
        {L}:
        ds_read_b32 v{vt}, v{vZ} offset:{f}
        {extra}
        s_add_u32 {sc}, {sc}, 1
        s_waitcnt lgkmcnt(0)
        v_cmp_le_u32 vcc, {n}, v{vt}
        s_cbranch_vccnz {D}
        """)
        if sleep: a(f"s_sleep {sleep}")
        a(f"""
        s_cmp_lt_u32 {sc}, {SPIN * 64}
        s_cbranch_scc1 {L}
        {D}:
        """)

    a(f"""
    s_cmp_ge_u32 s2, 256
    s_cbranch_scc1 L_END
    s_load_dwordx2 s[4:5], s[0:1], 0
    s_load_dwordx2 s[8:9], s[0:1], 120
    s_load_dwordx8 s[28:35], s[0:1], 64
    s_load_dwordx2 s[36:37], s[0:1], 96
    s_load_dwordx8 s[16:23], s[0:1], 8
    s_load_dwordx4 s[24:27], s[0:1], 40
    s_load_dwordx2 s[12:13], s[0:1], 104
    v_readfirstlane_b32 s3, v0
    v_and_b32 v1, 63, v0
    v_mov_b32 v{vZ}, 0
    v_mov_b32 v{vOne}, 1
    s_mov_b32 s6, 0x400000
    s_mov_b32 s7, 0x20000
    s_mov_b32 s10, 0x1000000
    s_mov_b32 s11, 0x20000
    s_mov_b32 s14, 0x400000
    s_mov_b32 s15, 0x20000
    s_lshr_b32 s3, s3, 6
    s_and_b32 s38, s3, 3
    s_and_b32 s39, s2, 7
    s_lshl_b32 s39, s39, 5
    s_lshr_b32 s40, s2, 3
    s_add_u32 s39, s39, s40
    """)
    if o['stamps']:
        for i in range(16): a(f"s_mov_b64 s[{64+2*i}:{65+2*i}], 0")
        stamp(0)
    a("""
    s_cmp_ge_u32 s3, 8
    s_cbranch_scc1 L_M
    s_cmp_ge_u32 s3, 4
    s_cbranch_scc1 L_S
    """)
    nt = o['rownt']
    a(f"""
    s_setprio 3
    v_lshlrev_b32 v8, 4, v1
    s_lshl_b32 s41, s2, 14
    s_lshl_b32 s42, s38, 12
    s_add_u32 s41, s41, s42
    s_waitcnt lgkmcnt(0)
    buffer_load_dwordx4 v[12:15], v8, s[4:7], s41 offen {nt}
    buffer_load_dwordx4 v[16:19], v8, s[4:7], s41 offen offset:1024 {nt}
    buffer_load_dwordx4 v[20:23], v8, s[4:7], s41 offen offset:2048 {nt}
    buffer_load_dwordx4 v[24:27], v8, s[4:7], s41 offen offset:3072 {nt}
    global_load_dwordx4 v[28:31], v8, s[28:29]
    global_load_dwordx4 v[32:35], v8, s[28:29] offset:1024
    global_load_dwordx4 v[36:39], v8, s[36:37]
    global_load_dwordx4 v[40:43], v8, s[36:37] offset:1024
    buffer_load_dword v49, off, s[8:11], 0 sc1
    v_mov_b32 v4, -1
    v_mov_b32 v5, -1
    v_mov_b32 v6, -1
    v_mov_b32 v7, -1
    s_lshl_b32 s41, s39, 13
    s_lshl_b32 s42, s38, 11
    s_add_u32 s41, s41, s42
    s_add_u32 s41, s41, {WS_H3}
    buffer_store_dwordx4 v[4:7], v8, s[8:11], s41 offen sc1
    buffer_store_dwordx4 v[4:7], v8, s[8:11], s41 offen offset:1024 sc1
    s_lshl_b32 s41, s39, 11
    s_lshl_b32 s42, s38, 9
    s_add_u32 s41, s41, s42
    s_add_u32 s41, s41, {WS_H2}
    v_lshlrev_b32 v9, 3, v1
    buffer_store_dwordx2 v[4:5], v9, s[8:11], s41 offen sc1
    s_barrier
    """)
    a(f"""
    s_mul_i32 s41, s38, {2*ROW_W}
    s_add_u32 s41, s41, {L_AS}
    v_add_u32 v9, s41, v8
    v_bfe_u32 v10, v1, 2, 2               ; r = (l>>2)&3
    v_lshrrev_b32 v11, 4, v1              ; gamma
    v_and_b32 v50, 3, v1                  ; c4
    v_lshlrev_b32 v51, 5, v11
    v_lshl_add_u32 v51, v50, 3, v51       ; (16*gamma+4*c4)*2
    v_mul_u32_u24 v52, {ROW_W}, v10
    s_lshl_b32 s41, s38, 9
    s_add_u32 s41, s41, {L_AS}
    v_add3_u32 v52, v52, v51, s41
    v_lshrrev_b32 v53, 2, v1
    v_lshlrev_b32 v53, 14, v53
    v_lshl_add_u32 v53, v50, 4, v53
    s_lshl_b32 s41, s38, 7
    v_add_u32 v51, s41, v51               ; + 64e*2
    v_mul_u32_u24 v54, {AS_W}, v10
    v_add_u32 v54, v54, v51
    v_add_u32 v54, {L_AS}, v54
    v_mul_u32_u24 v55, {UT_W}, v10
    v_add_u32 v55, v55, v51
    v_add_u32 v55, {L_UT + UT_PAD}, v55
    v_and_b32 v56, 255, v0                ; t = 64e + lane
    v_lshlrev_b32 v57, 1, v56
    v_add_u32 v57, {L_G}, v57
    v_lshlrev_b32 v58, 11, v56
    s_lshl_b32 s41, s39, 3
    v_add_u32 v58, s41, v58
    v_lshlrev_b32 v59, 5, v56
    v_lshlrev_b32 v60, 3, v56
    """)
    for j in range(1, 8): a(f"v_add_u32 v{60+j}, {j}, v60")
    a(f"""
    s_lshl_b32 s43, s2, 5
    s_lshl_b32 s42, s38, 3
    s_add_u32 s43, s43, s42
    s_add_u32 s44, s43, {WS_GT}
    s_add_u32 s43, s43, {WS_RT}
    s_lshl_b32 s45, s38, 20
    s_lshl_b32 s42, s2, 6
    s_add_u32 s45, s45, s42
    s_add_u32 s45, s45, {WS_UT}
    s_mov_b32 s46, 0
    s_brev_b32 s47, 1
    s_mov_b32 s48, 0xffff0000
    s_mov_b32 s49, 0x80008000
    s_waitcnt vmcnt(3)
    """)
    stamp(1)
    for i, off in enumerate((0, 1024, ROW_W, ROW_W + 1024)):
        a(f"ds_write_b128 v9, v[{12+4*i}:{15+4*i}] offset:{off}")
    signal(F_ROWS)
    for k in range(8):
        for q, (rw, wv) in enumerate(((12, 28), (20, 28), (12, 36), (20, 36))):
            a(f"v_dot2_f32_bf16 v{44+q}, v{rw+k}, v{wv+k}, {'0' if k == 0 else 'v%d' % (44+q)}")
    a(f"v_add_u32 v49, {TAGC}, v49")
    for ctl in ('quad_perm:[1,0,3,2] row_mask:0xf', 'quad_perm:[2,3,0,1] row_mask:0xf', 'row_half_mirror row_mask:0xf', 'row_mirror row_mask:0xf',
                'row_bcast:15 row_mask:0xa', 'row_bcast:31 row_mask:0xc'):
        for q in range(4): a(f"v_add_f32_dpp v{44+q}, v{44+q}, v{44+q} {ctl} bank_mask:0xf")
    a(f"""
    v_cvt_pk_bf16_f32 v48, v44, v45
    v_cvt_pk_bf16_f32 v46, v46, v47
    v_pk_ashrrev_i16 v44, 15, v48 op_sel_hi:[0,1]
    v_bitop3_b32 v48, v44, s49, v48 bitop3:0x56
    s_waitcnt vmcnt(0)
    s_mov_b64 exec, s[46:47]
    buffer_store_dwordx2 v[48:49], off, s[8:11], s43 sc1
    s_mov_b64 exec, -1
    """)
    stamp(2)
    tr = '\n'.join(f"ds_read_b64_tr_b16 v[{12+4*p+2*h}:{13+4*p+2*h}], v52 offset:{p*128 + h*4*ROW_W}" for p in range(4) for h in range(2))
    lwait(F_ROWS, 4, 10, extra=tr, sleep=0)
    for p in range(4):
        a(f"buffer_store_dwordx4 v[{12+4*p}:{15+4*p}], v53, s[8:11], s45 offen sc1")
        if p < 3: a(f"s_add_u32 s45, s45, {16*16384}")
    a(f"""
    v_lshlrev_b32 v44, 16, v46
    v_and_b32 v45, s48, v46
    v_mul_f32 v44, 0xbfb8aa3b, v44
    v_mul_f32 v45, 0xbfb8aa3b, v45
    v_exp_f32 v44, v44
    v_exp_f32 v45, v45
    v_add_f32 v44, 1.0, v44
    v_add_f32 v45, 1.0, v45
    v_rcp_f32 v44, v44
    v_rcp_f32 v45, v45
    v_cvt_pk_bf16_f32 v48, v44, v45
    v_and_b32 v48, 0x7fff7fff, v48
    ds_write_b32 v{vZ}, v49 offset:{L_TAG}
    s_waitcnt vmcnt(0)
    s_mov_b64 exec, s[46:47]
    buffer_store_dwordx2 v[48:49], off, s[8:11], s44 sc1
    ds_add_u32 v{vZ}, v{vOne} offset:{F_GPUB}
    s_mov_b64 exec, -1
    """)
    stamp(3)
    if o['edelay']: a(f"s_sleep {o['edelay']}")
    a(f"""
    s_mov_b32 s50, {WS_RT}
    s_mov_b32 s62, 0
    L_EP:
    buffer_load_dwordx4 v[12:15], v59, s[8:11], s50 offen sc1
    buffer_load_dwordx4 v[16:19], v59, s[8:11], s50 offen offset:16 sc1
    s_add_u32 s62, s62, 1
    s_waitcnt vmcnt(0)
    v_xor_b32 v20, v13, v49
    v_bitop3_b32 v20, v15, v49, v20 bitop3:0xbe
    v_bitop3_b32 v20, v17, v49, v20 bitop3:0xbe
    v_bitop3_b32 v20, v19, v49, v20 bitop3:0xbe
    v_cmp_ne_u32 vcc, 0, v20
    s_cbranch_vccz L_EPD
    s_sleep 4
    s_cmp_lt_u32 s62, {SPIN}
    s_cbranch_scc1 L_EP
    L_EPD:
    """)
    stamp(4)
    if o['stamps']: a("s_mov_b32 s92, s62")
    K = list(range(20, 28)); tmp = 28
    for j in range(4):
        a(f"v_lshl_or_b32 v{K[2*j]}, v{12+2*j}, 16, v{60+2*j}\nv_and_or_b32 v{K[2*j+1]}, v{12+2*j}, s48, v{61+2*j}")
    a(f"""
    v_max3_u32 v30, v{K[0]}, v{K[1]}, v{K[2]}
    v_max3_u32 v31, v{K[3]}, v{K[4]}, v{K[5]}
    v_max3_u32 v30, v30, v{K[6]}, v{K[7]}
    v_max_u32 v30, v30, v31
    """)
    net = [(0,1),(2,3),(4,5),(6,7),(0,2),(1,3),(4,6),(5,7),(1,2),(5,6),(0,4),(3,7),(1,5),(2,6),(1,4),(3,6),(2,4),(3,5),(3,4)]
    def ce():
        nonlocal tmp
        i, j = net.pop(0)
        a(f"v_max_u32 v{tmp}, v{K[i]}, v{K[j]}\nv_min_u32 v{K[j]}, v{K[i]}, v{K[j]}")
        K[i], tmp = tmp, K[i]
    for ctl in ('quad_perm:[1,0,3,2]', 'quad_perm:[2,3,0,1]', 'row_half_mirror', 'row_mirror'):
        ce()
        a(f"v_max_u32_dpp v30, v30, v30 {ctl} row_mask:0xf bank_mask:0xf")
    a(f"""
    s_lshl_b32 s41, s38, 4
    v_lshl_add_u32 v31, v11, 2, s41
    v_and_b32 v32, 15, v1
    v_lshlrev_b32 v32, 2, v32
    v_lshlrev_b32 v33, 4, v11
    ds_write_b32 v31, v30 offset:{L_GM}
    """)
    while net: ce()
    a(f"""
    s_mov_b32 s62, 0
    L_GMW:
    ds_read_b32 v34, v32 offset:{L_GM}
    ds_read_b128 v[36:39], v33 offset:{L_GM}
    s_add_u32 s62, s62, 1
    s_waitcnt lgkmcnt(0)
    v_cmp_eq_u32 vcc, 0, v34
    s_cbranch_vccz L_GMD
    s_cmp_lt_u32 s62, {SPIN*64}
    s_cbranch_scc1 L_GMW
    L_GMD:
    v_cmp_gt_u32 s[52:53], v36, v34
    v_cmp_gt_u32 s[54:55], v37, v34
    v_cmp_gt_u32 s[56:57], v38, v34
    v_cmp_gt_u32 s[58:59], v39, v34
    v_addc_co_u32 v35, vcc, 0, v{vZ}, s[52:53]
    v_addc_co_u32 v35, vcc, 0, v35, s[54:55]
    v_addc_co_u32 v35, vcc, 0, v35, s[56:57]
    v_addc_co_u32 v35, vcc, 0, v35, s[58:59]
    v_mov_b32 v36, v35
    v_permlane32_swap_b32 v35, v36
    v_add_u32 v35, v35, v36
    v_mov_b32 v36, v35
    v_permlane16_swap_b32 v35, v36
    v_add_u32 v35, v35, v36
    v_cmp_eq_u32 vcc, 7, v35
    s_ff1_i32_b64 s41, vcc
    s_and_b32 s41, s41, 63
    v_readlane_b32 s51, v34, s41          ; T
    s_lshl_b32 s42, s38, 3
    s_add_u32 s41, s42, 8
    """)
    for j in range(8):
        a(f"""
        v_cmp_le_u32 vcc, s51, v{K[j]}
        s_cbranch_vccz L_TKP
        s_bcnt1_i32_b64 s52, vcc
        v_mbcnt_lo_u32_b32 v35, vcc_lo, 0
        v_mbcnt_hi_u32_b32 v35, vcc_hi, v35
        v_add_lshl_u32 v35, v35, s42, 2
        s_add_u32 s42, s42, s52
        s_cmp_gt_u32 s42, s41
        s_cbranch_scc1 L_TKF
        s_mov_b64 exec, vcc
        ds_write_b32 v35, v{K[j]} offset:{L_LIST}
        s_mov_b64 exec, -1
        """)
    a("s_branch L_TKP")
    a(f"""
    L_TKF:
    s_mov_b32 s42, 0
    L_TKFL:
    v_mov_b32 v30, v{K[0]}
    """)
    for ctl in ('quad_perm:[1,0,3,2] row_mask:0xf', 'quad_perm:[2,3,0,1] row_mask:0xf', 'row_half_mirror row_mask:0xf', 'row_mirror row_mask:0xf',
                'row_bcast:15 row_mask:0xa', 'row_bcast:31 row_mask:0xc'):
        a(f"v_max_u32_dpp v30, v30, v30 {ctl} bank_mask:0xf")
    a(f"""
    v_readlane_b32 s52, v30, 63
    s_mov_b32 m0, s42
    v_cmp_eq_u32 vcc, s52, v{K[0]}
    v_writelane_b32 v35, s52, m0
    """)
    for j in range(7): a(f"v_cndmask_b32 v{K[j]}, v{K[j]}, v{K[j+1]}, vcc")
    a(f"""
    v_cndmask_b32 v{K[7]}, v{K[7]}, v{vZ}, vcc
    s_add_u32 s42, s42, 1
    s_cmp_lt_u32 s42, 8
    s_cbranch_scc1 L_TKFL
    s_lshl_b32 s42, s38, 5
    v_lshl_add_u32 v36, v1, 2, s42
    s_mov_b64 exec, 0xff
    ds_write_b32 v36, v35 offset:{L_LIST}
    s_mov_b64 exec, -1
    L_TKP:
    """)
    signal(F_TK)
    a(f"""
    v_and_b32 v32, 31, v1
    v_lshlrev_b32 v32, 2, v32
    v_lshrrev_b32 v33, 5, v1
    v_lshlrev_b32 v33, 6, v33
    """)
    ex = f"ds_read_b32 v34, v32 offset:{L_LIST}\n" + '\n'.join(f"ds_read_b128 v[{12+4*i}:{15+4*i}], v33 offset:{L_LIST+16*i}" for i in range(4))
    lwait(F_TK, 4, 10, extra=ex, sleep=0)
    for i in range(16 + 3):
        if i < 16: a(f"v_cmp_gt_u32 s[{52+2*(i%4)}:{53+2*(i%4)}], v{12+i}, v34")
        if i >= 3:
            k = i - 3
            a(f"v_addc_co_u32 v35, vcc, 0, v{vZ if k == 0 else 35}, s[{52+2*(k%4)}:{53+2*(k%4)}]")
    a(f"""
    v_mov_b32 v36, v35
    s_lshl_b32 s41, s38, 1
    s_add_u32 s42, s41, 1
    v_permlane32_swap_b32 v35, v36
    v_add_u32 v35, v35, v36               ; rank
    v_cmp_eq_u32 s[52:53], s41, v35
    v_cmp_eq_u32 s[54:55], s42, v35
    v_cmp_gt_u32 vcc, 8, v35
    v_lshlrev_b32 v36, 2, v35
    s_ff1_i32_b64 s52, s[52:53]
    s_ff1_i32_b64 s54, s[54:55]
    s_and_b32 s52, s52, 63
    s_and_b32 s54, s54, 63
    v_readlane_b32 s52, v34, s52
    v_readlane_b32 s54, v34, s54
    s_mul_i32 s41, s38, {2*XS_W}
    s_add_u32 s41, s41, {L_XS}
    s_and_b32 s42, s40, 1
    s_lshl_b32 s42, s42, 10
    s_and_b32 s52, s52, 2047
    s_and_b32 s54, s54, 2047
    s_lshl_b32 s52, s52, 11
    s_lshl_b32 s54, s54, 11
    s_add_u32 s52, s52, s42
    s_add_u32 s54, s54, s42
    s_mov_b32 m0, s41
    s_add_u32 s41, s41, {XS_W}
    buffer_load_dwordx4 v8, s[4:7], s52 offen lds
    s_mov_b32 m0, s41
    s_mov_b64 exec, vcc
    ds_write_b32 v36, v34 offset:{L_SEL}
    s_mov_b64 exec, -1
    buffer_load_dwordx4 v8, s[4:7], s54 offen lds
    """)
    stamp(5)
    a(f"""
    s_or_b32 s41, s2, s38
    s_cmp_lg_u32 s41, 0
    s_cbranch_scc1 L_NB
    s_mov_b64 exec, 1
    buffer_store_dword v49, off, s[8:11], 0 sc1
    s_mov_b64 exec, -1
    L_NB:
    v_and_b32 v37, 2047, v34
    v_lshrrev_b32 v38, 1, v37
    v_lshlrev_b32 v38, 2, v38
    v_and_b32 v37, 1, v37
    v_lshlrev_b32 v37, 4, v37
    v_mov_b32 v39, 0x8000
    v_lshlrev_b32 v39, v37, v39
    s_mov_b64 s[56:57], vcc
    s_waitcnt vmcnt(0)
    """)
    signal(F_XS)
    stamp(6)
    a("s_setprio 1\ns_brev_b32 s50, 1")
    for pi, T in enumerate(o['passes']):
        lwait(F_PASS, 4 * (pi + 1), 10, sleep=1)
        stamp(7 + 2 * pi)
        if pi == 0:
            a(f"s_mov_b64 exec, s[56:57]\nds_or_b32 v38, v39 offset:{L_G}\ns_mov_b64 exec, -1")
        for k, t in enumerate(T):
            b = 12 + 6 * k
            a(f"""
            v_mov_b32 v{b+4}, 0
            ds_read_b64_tr_b16 v[{b}:{b+1}], v54 offset:{512*t}
            ds_read_b64_tr_b16 v[{b+2}:{b+3}], v55 offset:{512*t}
            ds_read_u16_d16_hi v{b+4}, v57 offset:{512*t}
            """)
        for k, t in enumerate(T):
            b = 12 + 6 * k
            a(f"""
            s_mov_b32 s41, {t * 256 * 2048}
            s_waitcnt lgkmcnt({3*(len(T)-1-k)})
            v_lshlrev_b32 v68, 16, v{b}
            v_and_b32 v69, s48, v{b}
            v_lshlrev_b32 v70, 16, v{b+1}
            v_and_b32 v71, s48, v{b+1}
            v_lshlrev_b32 v72, 16, v{b+2}
            v_and_b32 v73, s48, v{b+2}
            v_lshlrev_b32 v74, 16, v{b+3}
            v_and_b32 v75, s48, v{b+3}
            v_pk_add_f32 v[68:69], v[68:69], v[72:73] neg_lo:[0,1] neg_hi:[0,1]
            v_pk_add_f32 v[70:71], v[70:71], v[74:75] neg_lo:[0,1] neg_hi:[0,1]
            v_and_or_b32 v{b+5}, v{b+4}, s50, v58
            v_pk_fma_f32 v[68:69], v[{b+4}:{b+5}], v[68:69], v[72:73] op_sel_hi:[0,1,1]
            v_pk_fma_f32 v[70:71], v[{b+4}:{b+5}], v[70:71], v[74:75] op_sel_hi:[0,1,1]
            v_cvt_pk_bf16_f32 v{b}, v68, v69
            v_cvt_pk_bf16_f32 v{b+1}, v70, v71
            buffer_store_dwordx2 v[{b}:{b+1}], v{b+5}, s[12:15], s41 offen
            """)
        stamp(8 + 2 * pi)
    dump_stamps(0)
    a("s_endpgm")

    a(f"""
    L_S:
    s_lshl_b32 s41, s39, 2
    s_add_u32 s41, s41, s38               ; d
    s_lshl_b32 s42, s41, 8
    v_lshl_add_u32 v4, v1, 2, s42
    s_lshl_b32 s42, s41, 1
    v_mov_b32 v5, s42
    v_mov_b32 v10, 0
    v_mov_b32 v11, 0
    s_waitcnt lgkmcnt(0)
    global_load_short_d16_hi v10, v5, s[24:25]
    global_load_dword v6, v4, s[16:17]
    global_load_dword v7, v4, s[18:19]
    global_load_dword v8, v4, s[20:21]
    global_load_dword v9, v4, s[22:23]
    global_load_short_d16_hi v11, v5, s[26:27]
    s_barrier
    s_mul_i32 s43, s38, {KR_W}
    s_add_u32 s43, s43, {L_KR}
    s_mul_i32 s44, s38, {UT_W}
    s_add_u32 s44, s44, {L_UT}
    s_mov_b32 s48, 0xffff0000
    v_mov_b32 v12, 0
    v_mov_b32 v13, 0
    v_mov_b32 v14, 0
    v_mov_b32 v15, 0
    v_lshl_add_u32 v16, v1, 4, s44
    s_mov_b64 exec, 0x3fffffff
    ds_write_b128 v16, v[12:15]
    s_mov_b64 exec, -1
    v_and_b32 v17, 15, v1                 ; j / n
    v_lshrrev_b32 v18, 4, v1              ; c / q
    v_lshl_add_u32 v19, v1, 3, s43
    v_mul_u32_u24 v20, {SCR_W}, v17
    v_lshl_add_u32 v20, v18, 4, v20
    v_add_u32 v20, s43, v20
    v_add_u32 v21, 1, v17
    v_and_b32 v22, 3, v21
    v_mul_u32_u24 v22, {KCP}, v22
    v_lshrrev_b32 v21, 2, v21
    v_lshlrev_b32 v21, 3, v21
    v_sub_u32 v22, v22, v21
    v_lshl_add_u32 v22, v18, 4, v22
    v_add3_u32 v22, v22, 32, s43
    v_lshlrev_b32 v23, 5, v17
    v_lshl_add_u32 v23, v18, 4, v23
    v_add_u32 v23, s44, v23
    s_mul_i32 s45, s38, {AS_W}
    s_add_u32 s45, s45, {L_AS}
    v_lshlrev_b32 v24, 5, v17
    v_lshl_add_u32 v24, v18, 3, v24
    v_add_u32 v24, s45, v24
    s_add_u32 s46, s43, {L_TAB}
    v_lshlrev_b32 v25, 5, v17             ; tile0: (8n + 4(q&1) + 128(q>>1))*4
    v_and_b32 v26, 1, v18
    v_lshl_add_u32 v25, v26, 4, v25
    v_lshrrev_b32 v27, 1, v18
    v_lshl_add_u32 v25, v27, 9, v25
    v_add_u32 v25, s46, v25
    v_lshlrev_b32 v28, 4, v17
    v_lshl_add_u32 v28, v26, 8, v28
    v_add_u32 v28, {256*4}, v28
    v_lshlrev_b32 v29, 3, v17
    v_lshl_add_u32 v29, v26, 8, v29
    v_add_u32 v29, {384*4}, v29
    v_cmp_eq_u32 vcc, 1, v27
    v_mov_b32 v30, 8
    v_mov_b32 v31, 128
    v_cndmask_b32 v26, v28, v29, vcc
    v_cndmask_b32 v27, v30, v31, vcc
    v_add_u32 v26, s46, v26
    v_add_u32 v27, v26, v27
    v_lshlrev_b32 v28, 2, v17             ; tile2: (512 + n + 64q)*4 + 64*i
    v_lshl_add_u32 v28, v18, 8, v28
    v_add_u32 v28, s46, v28
    v_add_u32 v28, {512*4}, v28
    s_waitcnt vmcnt(0)
    """)
    stamp(1)
    A_, B_ = 32, 34
    W1, W2, W4, W8, W128 = 36, 40, 44, 48, 52
    BASE, CH0, CH1, T0, T1 = 56, 60, 64, 68, 70
    PK = [72, 74]
    a(f"""
    v_mul_f32 v10, {LOG2E}, v10
    v_lshlrev_b32 v32, 16, v6
    v_and_b32 v33, s48, v6
    v_exp_f32 v10, v10
    v_mul_f32 v32, {LOG2E}, v32
    v_mul_f32 v33, {LOG2E}, v33
    v_exp_f32 v32, v32
    v_exp_f32 v33, v33
    v_cvt_pk_bf16_f32 v10, v10, v10
    v_lshlrev_b32 v34, 16, v7
    v_and_b32 v35, s48, v7
    v_cvt_pk_bf16_f32 v6, v32, v33
    v_and_b32 v10, s48, v10               ; dt
    v_lshlrev_b32 v32, 16, v6
    v_and_b32 v33, s48, v6
    v_mul_f32 v34, v34, v10
    v_mul_f32 v35, v35, v10
    v_mul_f32 v32, v32, v10
    v_mul_f32 v33, v33, v10
    v_mul_f32 v34, 0.15915494, v34
    v_mul_f32 v35, 0.15915494, v35
    v_mul_f32 v32, 0xbfb8aa3b, v32
    v_mul_f32 v33, 0xbfb8aa3b, v33
    v_add_f32 v10, v10, v10               ; 2*dt
    v_lshlrev_b32 v{BASE}, 16, v8
    v_and_b32 v{BASE+1}, s48, v8
    v_lshlrev_b32 v{BASE+2}, 16, v9
    v_and_b32 v{BASE+3}, s48, v9
    v_mul_f32 v{BASE}, v{BASE}, v10
    v_mul_f32 v{BASE+1}, v{BASE+1}, v10
    v_mul_f32 v{BASE+2}, v{BASE+2}, v10
    v_mul_f32 v{BASE+3}, v{BASE+3}, v10
    """)
    def direct(W, k, conj):
        lit = {1: '1.0', 8: '0x41000000', 128: '0x43000000'}[k]
        for m in range(2):
            a(f"v_mul_f32 v{T0+m}, {lit}, v{A_+m}\nv_mul_f32 v{T1+m}, {lit}, v{B_+m}")
        for m in range(2):
            a(f"v_rndne_f32 v{W+m}, v{T1+m}\nv_exp_f32 v{T0+m}, v{T0+m}")
        for m in range(2):
            if conj: a(f"v_sub_f32 v{T1+m}, v{W+m}, v{T1+m}")
            else: a(f"v_sub_f32 v{T1+m}, v{T1+m}, v{W+m}")
        for m in range(2):
            a(f"v_cos_f32 v{W+m}, v{T1+m}\nv_sin_f32 v{W+2+m}, v{T1+m}")
        a(f"v_pk_mul_f32 v[{W}:{W+1}], v[{W}:{W+1}], v[{T0}:{T0+1}]\nv_pk_mul_f32 v[{W+2}:{W+3}], v[{W+2}:{W+3}], v[{T0}:{T0+1}]")
    def cmul(D, X, W):
        a(f"""
        v_pk_mul_f32 v[{T0}:{T0+1}], v[{X+2}:{X+3}], v[{W+2}:{W+3}]
        v_pk_mul_f32 v[{T1}:{T1+1}], v[{X+2}:{X+3}], v[{W}:{W+1}]
        v_pk_fma_f32 v[{D+2}:{D+3}], v[{X}:{X+1}], v[{W+2}:{W+3}], v[{T1}:{T1+1}]
        v_pk_fma_f32 v[{D}:{D+1}], v[{X}:{X+1}], v[{W}:{W+1}], v[{T0}:{T0+1}] neg_lo:[0,0,1] neg_hi:[0,0,1]
        """)
    pkc = [0]
    def emit(X, row):
        p = PK[pkc[0] & 1]; pkc[0] += 1
        a(f"""
        v_cvt_pk_bf16_f32 v{p+1}, v{X+2}, v{X+3}
        v_cvt_pk_bf16_f32 v{p}, v{X}, v{X+1}
        ds_write_b64 v19, v[{p}:{p+1}] offset:{row*SCR_W}
        """)
    direct(W8, 8, True)
    a(f"v_mov_b32 v{PK[1]}, 0x3f803f80\nv_mov_b32 v{PK[1]+1}, 0\nds_write_b64 v19, v[{PK[1]}:{PK[1]+1}]\n.p2align 3")
    emit(W8, 1)
    cmul(CH0, W8, W8); emit(CH0, 2)
    for b in range(3, 16):
        cmul(CH0, CH0, W8); emit(CH0, b)
    BOP = 76
    AOP = 108
    ACC = 140
    for ks in range(8): a(f"ds_read_b128 v[{BOP+4*ks}:{BOP+4*ks+3}], v20 offset:{64*ks}")
    direct(W1, 1, False)
    direct(W128, 128, False)
    a(".p2align 3")
    cmul(W2, W1, W1); cmul(W4, W2, W2)
    def tile_reads():
        for ks in range(8): a(f"ds_read_b128 v[{AOP+4*ks}:{AOP+4*ks+3}], v20 offset:{64*ks}")
    def tile_mfma(t, nwait):
        a(f"s_waitcnt lgkmcnt({nwait})\n.p2align 3")
        for ks in range(8):
            c = '0' if ks == 0 else f"v[{ACC+4*t}:{ACC+4*t+3}]"
            a(f"v_mfma_f32_16x16x32_bf16 v[{ACC+4*t}:{ACC+4*t+3}], v[{AOP+4*ks}:{AOP+4*ks+3}], v[{BOP+4*ks}:{BOP+4*ks+3}], {c}")
    for j in range(2):
        if j: cmul(BASE, BASE, W128)
        emit(BASE, 8 * j)
        for i in range(1, 8):
            cmul(CH0, BASE if i == 1 else CH0, W1); emit(CH0, 8 * j + i)
    tile_reads()
    row = 0
    for j in range(2):
        cmul(BASE, BASE, W128); emit(BASE, row); row += 1
        for i in range(1, 4):
            cmul(CH0, BASE if i == 1 else CH0, W2); emit(CH0, row); row += 1
        if j == 0: tile_mfma(0, 4)
    for j in range(4):
        cmul(BASE, BASE, W128); emit(BASE, row); row += 1
        cmul(CH0, BASE, W4); emit(CH0, row); row += 1
    tile_reads()
    for j in range(9):
        cmul(BASE, BASE, W128); emit(BASE, j)
        if j == 3: tile_mfma(1, 4)
    tile_reads()
    a(f"""
    v_cmp_eq_u32 vcc, 0, v1
    v_cndmask_b32 v11, 0, v11, vcc
    v_add_f32 v{ACC}, v{ACC}, v11
    ds_write_b128 v25, v[{ACC}:{ACC+3}]
    ds_write_b64 v26, v[{ACC+4}:{ACC+5}]
    ds_write_b64 v27, v[{ACC+6}:{ACC+7}]
    """)
    tile_mfma(2, 3)
    a(f"""
    v_lshl_add_u32 v30, v1, 3, s46
    v_lshl_add_u32 v31, v1, 4, s46
    v_sub_u32 v32, 63, v1
    v_lshl_add_u32 v33, v32, 5, s43
    v_lshl_add_u32 v34, v32, 4, s43       ; seg2: 2*(1528-8i) = 2048 + 16*(63-i)
    v_lshl_add_u32 v35, v32, 3, s43
    v_lshl_add_u32 v36, v1, 4, s43
    v_and_b32 v37, 1, v1
    v_lshl_add_u32 v37, v37, 4, s43
    ds_write2_b32 v28, v{ACC+8}, v{ACC+9} offset0:0 offset1:16
    ds_write2_b32 v28, v{ACC+10}, v{ACC+11} offset0:32 offset1:48
    ds_read_b128 v[40:43], v31
    ds_read_b64 v[44:45], v30 offset:{256*4}
    ds_read_b32 v46, v30 offset:{258*4}
    ds_read_b64 v[48:49], v30 offset:{384*4}
    ds_read_b32 v50, v30 offset:{386*4}
    ds_read_b64 v[52:53], v30 offset:{512*4}
    ds_read_b32 v54, v30 offset:{514*4}
    ds_write_b128 v37, v[12:15] offset:4096
    s_waitcnt lgkmcnt(7)
    v_cvt_pk_bf16_f32 v56, v43, v42
    v_cvt_pk_bf16_f32 v57, v41, v40
    ds_write_b64 v35, v[56:57] offset:3584
    s_waitcnt lgkmcnt(6)
    v_cvt_pk_bf16_f32 v58, v46, v45
    v_cvt_pk_bf16_f32 v59, v44, v44
    ds_write_b64 v35, v[58:59] offset:3072
    s_waitcnt lgkmcnt(5)
    v_cvt_pk_bf16_f32 v60, v50, v50
    v_cvt_pk_bf16_f32 v61, v49, v49
    v_cvt_pk_bf16_f32 v62, v49, v48
    v_cvt_pk_bf16_f32 v63, v48, v48
    ds_write_b128 v34, v[60:63] offset:2048
    s_waitcnt lgkmcnt(4)
    v_cvt_pk_bf16_f32 v64, v54, v54
    v_cvt_pk_bf16_f32 v65, v54, v54
    v_cvt_pk_bf16_f32 v66, v53, v53
    v_cvt_pk_bf16_f32 v67, v53, v53
    v_cvt_pk_bf16_f32 v68, v53, v53
    v_cvt_pk_bf16_f32 v69, v53, v52
    v_cvt_pk_bf16_f32 v70, v52, v52
    v_cvt_pk_bf16_f32 v71, v52, v52
    ds_write_b128 v33, v[64:67]
    ds_write_b128 v33, v[68:71] offset:16
    v_add_u32 v38, -8, v36
    v_add_u32 v39, -8, v37
    """)
    for r in range(5):
        b = 76 + 6 * r
        base, basem, off = (36, 38, 1024 * r) if r < 4 else (37, 39, 4096)
        a(f"ds_read_b64 v[{b}:{b+1}], v{basem} offset:{off}\nds_read_b128 v[{b+2}:{b+5}], v{base} offset:{off}")
    for r in range(5):
        b = 76 + 6 * r; d = 108 + 12 * (r & 1)
        base, off = (36, 1024 * r) if r < 4 else (37, 4096)
        a(f"s_waitcnt lgkmcnt({min(15, 2*(4-r) + 3*r)})")
        for k in range(4): a(f"v_alignbit_b32 v{d+k}, v{b+2+k}, v{b+1+k}, 16")
        a(f"ds_write_b128 v{base}, v[{d}:{d+3}] offset:{off + KCP}")
        for k in range(4): a(f"v_mov_b32 v{d+4+k}, v{b+1+k}")
        a(f"ds_write_b128 v{base}, v[{d+4}:{d+7}] offset:{off + 2*KCP}")
        for k in range(4): a(f"v_alignbit_b32 v{d+8+k}, v{b+1+k}, v{b+k}, 16")
        a(f"ds_write_b128 v{base}, v[{d+8}:{d+11}] offset:{off + 3*KCP}")
    stamp(2)
    a(f"""
    v_and_b32 v30, 255, v0
    v_lshlrev_b32 v31, 5, v30
    v_lshlrev_b32 v32, 4, v30
    v_add_u32 v32, {L_G}, v32
    v_and_b32 v33, 3, v1
    v_mul_u32_u24 v33, {UT_W}, v33
    v_lshrrev_b32 v34, 2, v1
    v_lshl_add_u32 v33, v34, 4, v33
    s_lshl_b32 s41, s38, 10
    s_add_u32 s41, s41, {L_UT + UT_PAD}
    v_add_u32 v33, s41, v33
    v_lshlrev_b32 v34, 4, v1
    s_lshl_b32 s41, s39, 14
    s_lshl_b32 s42, s38, 12
    s_add_u32 s41, s41, s42
    s_add_u32 s41, s41, {WS_UT}
    s_mov_b32 s50, {WS_GT}
    """)
    lwait(F_GPUB, 4, 35, extra=f"ds_read_b32 v36, v{vZ} offset:{L_TAG}", sleep=1)
    stamp(3)
    if o['sdelay']: a(f"s_sleep {o['sdelay']}")
    a(f"""
    s_mov_b32 s62, 0
    L_SP:
    buffer_load_dwordx4 v[40:43], v31, s[8:11], s50 offen sc1
    buffer_load_dwordx4 v[44:47], v31, s[8:11], s50 offen offset:16 sc1
    s_add_u32 s62, s62, 1
    s_waitcnt vmcnt(0)
    v_xor_b32 v37, v41, v36
    v_bitop3_b32 v37, v43, v36, v37 bitop3:0xbe
    v_bitop3_b32 v37, v45, v36, v37 bitop3:0xbe
    v_bitop3_b32 v37, v47, v36, v37 bitop3:0xbe
    v_cmp_ne_u32 vcc, 0, v37
    s_cbranch_vccz L_SPD
    s_sleep 4
    s_cmp_lt_u32 s62, {SPIN}
    s_cbranch_scc1 L_SP
    L_SPD:
    """)
    for k in range(4): a(f"buffer_load_dwordx4 v[{48+4*k}:{51+4*k}], v34, s[8:11], s41 offen offset:{1024*k} sc1")
    stamp(4)
    if o['stamps']: a("s_mov_b32 s92, s62")
    a(f"ds_write2_b32 v32, v40, v42 offset0:0 offset1:1\nds_write2_b32 v32, v44, v46 offset0:2 offset1:3")
    for k in range(4): a(f"s_waitcnt vmcnt({3-k})\nds_write_b128 v33, v[{48+4*k}:{51+4*k}] offset:{256*k}")
    signal(F_UT)
    lwait(F_UT, 4, 35, sleep=0)
    stamp(5)
    CACC = 136; NS = 26; SL0 = 28
    mf = []
    for pi, T in enumerate(o['passes']):
        seen = set()
        for be in range(8):
            for al in range(max(T) + 1):
                for t in T:
                    if t >= al:
                        mf.append((t, (pi, 'A', al, be), (pi, 'B', t - al, be), t not in seen, pi)); seen.add(t)
    order = []; last = {}; firstuse = {}
    for i, m in enumerate(mf):
        for k in (m[1], m[2]):
            if k not in firstuse: firstuse[k] = i; order.append(k)
            last[k] = i
    free = list(range(NS)); slot = {}; dsq = []
    done_at = {}
    nds = [0]; waited = [0]
    def ds(txt):
        a(txt); nds[0] += 1
    def load(k):
        s = free.pop(0); slot[k] = s; r = SL0 + 4 * s
        if k[1] == 'A':
            de = 16 * k[2] + 2 * k[3] + 1; off = 32 * (127 - de)
            ds(f"ds_read_b64 v[{r}:{r+1}], v22 offset:{off}"); ds(f"ds_read_b64 v[{r+2}:{r+3}], v22 offset:{off+8}")
        else:
            off = UT_PAD + 512 * k[2] - 32 * (2 * k[3] + 1)
            ds(f"ds_read_b128 v[{r}:{r+3}], v23 offset:{off}")
        done_at[k] = nds[0]
    pend = []
    oi = 0
    a(".p2align 3")
    for i, m in enumerate(mf):
        budget = 3
        while oi < len(order) and free and (firstuse[order[oi]] <= i or (firstuse[order[oi]] <= i + o['look'] and budget > 0 and nds[0] - waited[0] <= 12)):
            budget -= 2 if order[oi][1] == 'A' else 1
            load(order[oi]); oi += 1
        need = max(done_at[m[1]], done_at[m[2]])
        if need > waited[0]:
            a(f"s_waitcnt lgkmcnt({nds[0] - need})"); waited[0] = need
            assert nds[0] - need <= 15
        t = m[0]; ra = SL0 + 4 * slot[m[1]]; rb = SL0 + 4 * slot[m[2]]
        c = '0' if m[3] else f"v[{CACC+4*t}:{CACC+4*t+3}]"
        a(f"v_mfma_f32_16x16x32_bf16 v[{CACC+4*t}:{CACC+4*t+3}], v[{ra}:{ra+3}], v[{rb}:{rb+3}], {c}")
        for k in (m[1], m[2]):
            if last[k] == i and k in slot: free.append(slot.pop(k))
        if pend and pend[0][0] <= i:
            _, txt, n = pend.pop(0); a(txt); nds[0] += n
        if i + 1 == len(mf) or mf[i + 1][4] != m[4]:
            T = o['passes'][m[4]]
            for k, t in enumerate(T):
                r = CACC + 4 * t
                pend.append((i + 5 + k, f"v_cvt_pk_bf16_f32 v{r}, v{r}, v{r+1}\nv_cvt_pk_bf16_f32 v{r+1}, v{r+2}, v{r+3}\nds_write_b64 v24, v[{r}:{r+1}] offset:{512*t}", 1))
            pend.append((i + 5 + len(T), f"s_mov_b64 exec, 1\nds_add_u32 v{vZ}, v{vOne} offset:{F_PASS}\ns_mov_b64 exec, -1", 1))
    for _, txt, n in pend: a(txt)
    stamp(6)
    if o['dbg']:
        a(f"""
        s_waitcnt lgkmcnt(0)
        s_lshl_b32 s41, s39, 2
        s_add_u32 s41, s41, s38
        s_mul_i32 s41, s41, 4160
        s_add_u32 s41, s41, {WS_DBG}
        v_lshl_add_u32 v30, v1, 4, s43
        v_lshlrev_b32 v31, 4, v1
        """)
        for r in range(4):
            a(f"ds_read_b128 v[40:43], v30 offset:{1024*r}\ns_waitcnt lgkmcnt(0)\nbuffer_store_dwordx4 v[40:43], v31, s[8:11], s41 offen offset:{1024*r}\ns_waitcnt vmcnt(0)")
    dump_stamps(1)
    a("s_endpgm")

    wnt = o['wnt']; TH = o['th']
    RAW = 24
    a(f"""
    L_M:
    s_setprio 2
    v_mov_b32 v4, 0
    v_mov_b32 v5, 0
    v_mov_b32 v6, 0
    v_mov_b32 v7, 0
    v_lshlrev_b32 v8, 4, v1
    ds_write_b128 v8, v[4:7]
    s_getpc_b64 s[48:49]
    L_PC:
    s_sub_u32 s48, s48, L_PC-{KNAME}
    s_subb_u32 s49, s49, 0
    s_lshl_b32 s41, s40, 2
    s_add_u32 s41, s41, s38
    s_lshl_b32 s41, s41, 8
    v_lshl_add_u32 v9, v1, 7, s41
    v_min_u32 v9, L_END-{KNAME}, v9
    s_mov_b64 exec, 3
    global_load_dword v160, v9, s[48:49]
    s_mov_b64 exec, -1
    v_and_b32 v11, 15, v1                 ; cq / n
    v_lshrrev_b32 v12, 4, v1              ; kc / q
    s_and_b32 s50, s40, 3                 ; member j
    s_and_b32 s51, s2, 7
    s_mul_i32 s51, s51, 7
    s_lshr_b32 s41, s40, 2
    s_add_u32 s51, s51, s41               ; cluster c
    v_mul_u32_u24 v13, {8*7168}, v12
    v_lshl_add_u32 v13, v11, 3, v13       ; W1 voffset
    v_and_b32 v14, 1, v12
    v_lshlrev_b32 v14, 5, v14
    v_lshrrev_b32 v15, 1, v12
    v_add_lshl_u32 v14, v14, v15, 11
    v_lshl_add_u32 v14, v11, 3, v14       ; W2 voffset
    s_and_b32 s41, s50, 1
    s_lshl_b32 s41, s41, 2
    s_add_u32 s41, s41, s38
    s_mul_i32 s52, s41, {128*7168}
    s_lshl_b32 s41, s51, 7
    s_add_u32 s52, s52, s41               ; W1 soffset
    s_lshl_b32 s53, s51, 17
    s_lshl_b32 s41, s50, 9
    s_add_u32 s53, s53, s41
    s_lshl_b32 s41, s38, 7
    s_add_u32 s53, s53, s41               ; W2 soffset
    s_mov_b32 s58, 7340032
    s_mov_b32 s59, 0x20000
    s_mov_b32 s46, 7340032
    s_mov_b32 s47, 0x20000
    s_mov_b32 s54, 0x05040100
    s_mov_b32 s55, 0x07060302
    s_cmp_ge_u32 s50, 2
    s_waitcnt lgkmcnt(0)
    s_cselect_b32 s56, s32, s30
    s_cselect_b32 s57, s33, s31
    s_mov_b32 s44, s34
    s_mov_b32 s45, s35
    s_barrier
    s_cmp_ge_u32 s40, 28
    s_cbranch_scc1 L_M3
    """)
    blk = [RAW + 16 * i for i in range(1, 7)]; spare = [RAW]
    opnd = {}
    issued = [0]
    def wload(s, i):
        r = blk[s] + 2 * i
        if s < 4:
            a(f"buffer_load_dwordx2 v[{r}:{r+1}], v13, s[56:59], s52 offen {wnt}")
            a(f"s_add_u32 s52, s52, {7168 if i < 7 else 25*7168}")
        else:
            a(f"buffer_load_dwordx2 v[{r}:{r+1}], v14, s[44:47], s53 offen {wnt}")
            if i < 7: a(f"s_add_u32 s53, s53, {4*2048}")
            else: a(f"s_sub_u32 s53, s53, {26*2048}")
        issued[0] += 1
    def perm(s):
        d = spare[0]; r = blk[s]
        for e in range(4):
            for p in range(4):
                a(f"v_perm_b32 v{d+4*e+p}, v{r+4*p+2+(e>>1)}, v{r+4*p+(e>>1)}, s{54+(e&1)}")
        opnd[s] = d; spare[0] = r
    seq = [(s, i) for s in range(6) for i in range(8)]
    nW1 = 32; permed = 0
    lim = 48 if o['w2early'] else 32
    for n, (s, i) in enumerate(seq[:lim]):
        if n >= TH and n - TH < nW1:
            a(f"s_waitcnt vmcnt({TH-1})")
            if (n - TH + 1) % 8 == 0:
                wload(s, i); perm(permed); permed += 1
                continue
        wload(s, i)
    while permed < 4:
        a(f"s_waitcnt vmcnt({lim - 8*(permed+1)})"); perm(permed); permed += 1
    stamp(1)
    XO = 144; FA = 128
    FA = spare[0]
    a(f"""
    v_and_b32 v15, 7, v1
    v_mul_u32_u24 v16, {XS_W}, v15
    v_lshl_add_u32 v16, v12, 4, v16
    s_lshl_b32 s41, s38, 8
    s_add_u32 s41, s41, {L_XS}
    v_add_u32 v16, s41, v16
    v_mul_u32_u24 v17, {P_T}, v15
    v_lshl_add_u32 v17, v12, 4, v17
    s_mul_i32 s41, s38, {P_W}
    s_add_u32 s41, s41, {L_P}
    v_add_u32 v17, s41, v17
    v_and_b32 v18, 255, v0
    v_lshrrev_b32 v19, 5, v18
    v_and_b32 v20, 31, v18
    v_mul_u32_u24 v21, {P_T}, v19
    v_lshl_add_u32 v21, v20, 3, v21
    v_add_u32 v21, {L_P}, v21
    v_mul_u32_u24 v22, {HS_W}, v19
    v_lshl_add_u32 v22, v20, 2, v22
    v_add_u32 v22, {L_HS}, v22
    v_mul_u32_u24 v23, {HS_W}, v15
    v_lshl_add_u32 v23, v12, 4, v23
    v_add_u32 v23, {L_HS}, v23
    v_lshlrev_b32 v18, 3, v18             ; H2 voffset
    s_lshl_b32 s48, s39, 11
    s_add_u32 s48, s48, {WS_H2}
    s_and_b32 s49, s48, {~(3 << 11) & 0xffffffff}
    s_add_u32 s60, s49, 4096
    s_mov_b32 s42, 0x00ff00ff
    s_mov_b32 s43, 0x00ff00ff
    v_lshlrev_b32 v19, 15, v12
    v_lshl_add_u32 v19, v15, 4, v19
    s_lshl_b32 s61, s50, 2
    s_add_u32 s61, s61, s38
    s_lshl_b32 s61, s61, 17
    s_lshl_b32 s41, s51, 7
    s_add_u32 s61, s61, s41
    s_add_u32 s61, s61, {WS_H3}
    """)
    ex = '\n'.join(f"ds_read_b128 v[{XO+4*s}:{XO+4*s+3}], v16 offset:{64*s}" for s in range(4))
    lwait(F_XS, 4, 10, extra=ex, sleep=1)
    stamp(2)
    if not o['w2early']:
        for (s, i) in seq[32:]: wload(s, i)
    for s in range(4):
        for e in range(4):
            c = '0' if s == 0 else f"v[{FA+4*e}:{FA+4*e+3}]"
            a(f"v_mfma_f32_16x16x32_bf16 v[{FA+4*e}:{FA+4*e+3}], v[{opnd[s]+4*e}:{opnd[s]+4*e+3}], v[{XO+4*s}:{XO+4*s+3}], {c}")
    a("s_mov_b64 exec, s[42:43]")
    for e in range(4): a(f"ds_write_b128 v17, v[{FA+4*e}:{FA+4*e+3}] offset:{64*e}")
    signal(F_P)
    ex = '\n'.join(f"ds_read_b64 v[{XO+2*w}:{XO+2*w+1}], v21 offset:{P_W*w}" for w in range(4))
    lwait(F_P, 4, 10, extra=ex, sleep=0)
    a(f"""
    v_pk_add_f32 v[{XO}:{XO+1}], v[{XO}:{XO+1}], v[{XO+2}:{XO+3}]
    v_pk_add_f32 v[{XO+4}:{XO+5}], v[{XO+4}:{XO+5}], v[{XO+6}:{XO+7}]
    v_pk_add_f32 v[{XO}:{XO+1}], v[{XO}:{XO+1}], v[{XO+4}:{XO+5}]
    buffer_store_dwordx2 v[{XO}:{XO+1}], v18, s[8:11], s48 offen sc1
    """)
    stamp(3)
    spare[0] = opnd[0]
    a("s_waitcnt vmcnt(9)"); perm(4)
    a("s_waitcnt vmcnt(1)"); perm(5)
    H = XO + 8
    a(f"""
    s_waitcnt vmcnt(0)
    s_mov_b32 s62, 0
    L_H2:
    buffer_load_dwordx2 v[{H}:{H+1}], v18, s[8:11], s49 offen sc1
    buffer_load_dwordx2 v[{H+2}:{H+3}], v18, s[8:11], s49 offen offset:2048 sc1
    buffer_load_dwordx2 v[{H+4}:{H+5}], v18, s[8:11], s60 offen sc1
    buffer_load_dwordx2 v[{H+6}:{H+7}], v18, s[8:11], s60 offen offset:2048 sc1
    s_add_u32 s62, s62, 1
    s_waitcnt vmcnt(0)
    v_max3_u32 v10, v{H}, v{H+1}, v{H+2}
    v_max3_u32 v9, v{H+3}, v{H+4}, v{H+5}
    v_max3_u32 v10, v10, v{H+6}, v{H+7}
    v_pk_add_f32 v[{XO}:{XO+1}], v[{H}:{H+1}], v[{H+2}:{H+3}]
    v_max_u32 v10, v10, v9
    v_pk_add_f32 v[{XO+2}:{XO+3}], v[{H+4}:{H+5}], v[{H+6}:{H+7}]
    v_cmp_eq_u32 vcc, -1, v10
    s_cbranch_vccz L_H2D
    s_cmp_lt_u32 s62, {SPIN}
    s_cbranch_scc1 L_H2
    L_H2D:
    """)
    stamp(4)
    if o['stamps']: a("s_mov_b32 s92, s62")
    a(f"""
    v_mul_f32 v{XO+4}, 0xbfb8aa3b, v{XO}
    v_mul_f32 v{XO+5}, 0xbfb8aa3b, v{XO+1}
    v_exp_f32 v{XO+4}, v{XO+4}
    v_exp_f32 v{XO+5}, v{XO+5}
    v_pk_mul_f32 v[{XO}:{XO+1}], v[{XO}:{XO+1}], v[{XO+2}:{XO+3}]
    v_add_f32 v{XO+4}, 1.0, v{XO+4}
    v_add_f32 v{XO+5}, 1.0, v{XO+5}
    v_rcp_f32 v{XO+4}, v{XO+4}
    v_rcp_f32 v{XO+5}, v{XO+5}
    v_pk_mul_f32 v[{XO}:{XO+1}], v[{XO}:{XO+1}], v[{XO+4}:{XO+5}]
    v_cvt_pk_bf16_f32 v10, v{XO}, v{XO+1}
    ds_write_b32 v22, v10
    """)
    signal(F_H)
    ex = '\n'.join(f"ds_read_b128 v[{XO+4*s}:{XO+4*s+3}], v23 offset:{64*s}" for s in range(2))
    lwait(F_H, 4, 10, extra=ex, sleep=0)
    FB = opnd[1]
    for s in range(2):
        for e in range(4):
            c = '0' if s == 0 else f"v[{FB+4*e}:{FB+4*e+3}]"
            a(f"v_mfma_f32_16x16x32_bf16 v[{FB+4*e}:{FB+4*e+3}], v[{opnd[4+s]+4*e}:{opnd[4+s]+4*e+3}], v[{XO+4*s}:{XO+4*s+3}], {c}")
    for e, i in ((0, 1), (0, 2), (1, 2), (0, 3), (1, 3), (2, 3)):
        a(f"v_swap_b32 v{FB+4*e+i}, v{FB+4*i+e}")
    a("s_mov_b64 exec, s[42:43]")
    for i in range(4):
        a(f"buffer_store_dwordx4 v[{FB+4*i}:{FB+4*i+3}], v19, s[8:11], s61 offen sc1")
        if i < 3: a("s_add_u32 s61, s61, 8192")
    a("s_mov_b64 exec, -1")
    stamp(5)
    a(f"""
    L_M3:
    s_cmp_lg_u32 s38, 0
    s_cbranch_scc1 L_MEND
    v_and_b32 v15, 7, v1
    v_lshlrev_b32 v16, 2, v15
    v_lshrrev_b32 v17, 1, v12
    v_and_b32 v18, 1, v12
    v_lshl_or_b32 v17, v18, 1, v17
    s_lshl_b32 s48, s39, 13
    s_add_u32 s48, s48, {WS_H3}
    s_add_u32 s49, s48, 4096
    """)
    lwait(F_XS, 4, 10, extra=f"ds_read_b32 v20, v16 offset:{L_SEL}", sleep=2)
    a(f"""
    v_and_b32 v21, 2047, v20              ; row
    v_ashrrev_i32 v22, 31, v20
    v_not_b32 v22, v22
    v_or_b32 v22, 0x80000000, v22
    v_xor_b32 v20, v20, v22
    v_and_b32 v20, 0xffff0000, v20
    v_mul_f32 v20, 0xbfb8aa3b, v20
    v_exp_f32 v20, v20
    v_lshlrev_b32 v22, 1, v21
    v_mul_u32_u24 v23, {AS_W}, v17
    v_add_f32 v20, 1.0, v20
    v_rcp_f32 v20, v20
    v_add_u32 v23, v23, v22
    v_add_u32 v23, {L_AS}, v23
    v_mul_u32_u24 v18, {UT_W}, v17
    v_add_u32 v18, v18, v22
    v_add_u32 v18, {L_UT + UT_PAD}, v18
    v_lshlrev_b32 v21, 11, v21
    v_lshl_add_u32 v21, v17, 1, v21
    s_lshl_b32 s41, s39, 3
    v_add_u32 v21, s41, v21
    v_mov_b32 v4, 0
    v_mov_b32 v5, 0
    v_mov_b32 v6, 0
    s_waitcnt vmcnt(0)
    s_mov_b32 s63, 0
    L_H3:
    """)
    Y = 24
    for k in range(7):
        a(f"buffer_load_dwordx4 v[{Y+4*k}:{Y+4*k+3}], v8, s[8:11], {'s48' if k < 4 else 's49'} offen offset:{1024*(k%4)} sc1")
    a("s_add_u32 s63, s63, 1")
    for k in range(7):
        r = Y + 4 * k
        a(f"s_waitcnt vmcnt({6-k})")
        if k == 0: a(f"v_max3_u32 v10, v{r}, v{r+1}, v{r+2}\nv_max_u32 v10, v10, v{r+3}")
        else:
            a(f"v_max3_u32 v10, v10, v{r}, v{r+1}\nv_pk_add_f32 v[{Y}:{Y+1}], v[{Y}:{Y+1}], v[{r}:{r+1}]\nv_max3_u32 v10, v10, v{r+2}, v{r+3}\nv_pk_add_f32 v[{Y+2}:{Y+3}], v[{Y+2}:{Y+3}], v[{r+2}:{r+3}]")
    a(f"""
    v_cmp_eq_u32 vcc, -1, v10
    s_cbranch_vccz L_H3D
    s_sleep 2
    s_cmp_lt_u32 s63, {SPIN}
    s_cbranch_scc1 L_H3
    L_H3D:
    """)
    stamp(6)
    if o['stamps']: a("s_mov_b32 s90, s63")
    a(f"""
    v_permlane32_swap_b32 v{Y}, v{Y+1}
    v_permlane32_swap_b32 v{Y+2}, v{Y+3}
    v_add_f32 v{Y}, v{Y}, v{Y+1}
    v_add_f32 v{Y+2}, v{Y+2}, v{Y+3}
    v_permlane16_swap_b32 v{Y}, v{Y+2}
    v_add_f32 v{Y}, v{Y}, v{Y+2}
    v_add_f32_dpp v{Y}, v{Y}, v{Y} row_ror:8 row_mask:0xf bank_mask:0xf
    """)
    ex = f"ds_read_u16_d16_hi v4, v23\nds_read_u16_d16_hi v5, v18\nds_read_u16_d16_hi v6, v22 offset:{L_G}"
    lwait(F_PASS, 4 * len(o['passes']), 10, extra=ex, sleep=1)
    a(f"""
    v_fma_f32 v5, v{Y}, v20, v5
    v_sub_f32 v4, v4, v5
    v_fma_f32 v4, |v6|, v4, v5
    v_cvt_pk_bf16_f32 v4, v4, v4
    s_mov_b32 s42, 0x00ff00ff
    s_mov_b32 s43, 0x00ff00ff
    s_mov_b64 exec, s[42:43]
    buffer_store_short v4, v21, s[12:15], 0 offen
    """)
    stamp(7)
    a("L_MEND:")
    dump_stamps(2)
    a("L_END:\ns_endpgm")
    lines = hazard.fix(a.l, verbose=kw.get('verbose', False))
    k = kernel_text(KNAME, '\n'.join(lines) + '\n', 168, sgpr=102)
    return file_text([f'@launch grid=(256,1,1) block=(768,1,1) lds={LDS_BYTES}'], [k])

if __name__ == '__main__':
    out = sys.argv[1]
    kw = {}
    for x in sys.argv[2:]:
        k, v = x.split('=', 1); kw[k] = eval(v)
    open(out, 'w').write(gen(**kw))
```

```python
def conv2_stream(a, vB, vC, vK, vW, vZ, vOne, sig, UT_PAD, AF, A33, AFIX, SL0, NS, K2X, K2Y, K3, CB,
                 maxout=13, lead=6, look=14, epilag=3, valu_per_gap=2):
    R = lambda r: ('R', r)
    mf = []
    side = []
    started = set()
    def M(dst, A, B):
        mf.append((dst, A, B, dst not in started)); started.add(dst)
    packs = []
    tile_end = {}
    for t in range(8):
        if t >= 2:
            s = t - 2
            for q in range(4):
                M(('T', 2, s, q), ('U', s, 8 if q == 3 else 0, t), ('C', (0, 1, 2, 1)[q], t))
                if q & 1: packs.append((len(mf) - 1, ('P2', s, q >> 1), (('T', 2, s, q - 1), ('T', 2, s, q))))
            M(('acc', t), R(A33), ('U', s, 0, t))
        if t >= 4:
            s = t - 4
            for q in range(2):
                M(('T', 3, s, q), ('U', s, 8 * q, t), ('C', 3 + q, t))
            packs.append((len(mf) - 1, ('P3', s), (('T', 3, s, 0), ('T', 3, s, 1))))
            M(('acc', t), R(AFIX), ('U', s, 0, t))
        for be in range(8):
            M(('acc', t), R(AF + 4 * be), ('B', t, be))
            if t < 7: M(('acc', t + 1), R(AF + 32 + 4 * be), ('B', t, be))
        for al in (4, 3, 2):
            if t - al >= 0:
                for h in range(2): M(('acc', t), ('P2', t - al, h), ('K2', al, h, t))
        for al in range(7, 3, -1):
            if t - al >= 0: M(('acc', t), ('P3', t - al), ('K3', al, t))
        tile_end[t] = max(i for i, m in enumerate(mf) if m[0] == ('acc', t))
    loadable = lambda k: k[0] in ('U', 'B', 'C', 'K2', 'K3')
    order = []; last = {}; firstuse = {}
    for i, m in enumerate(mf):
        for k in (m[1], m[2]):
            if k[0] == 'R': continue
            if k not in firstuse:
                firstuse[k] = i
                if loadable(k): order.append(k)
            last[k] = i
    free = list(range(NS)); slot = {}; done_at = {}
    minfree = [NS]
    def alloc(k):
        assert free, f'out of slots at {k}'
        slot[k] = free.pop(0); minfree[0] = min(minfree[0], len(free))
    reg = lambda k: k[1] if k[0] == 'R' else SL0 + 4 * slot[k]
    nds = [0]; waited = [0]
    def load(k):
        alloc(k); r = reg(k)
        if k[0] == 'B': v, off = vB, UT_PAD + 512 * k[1] - 32 * (2 * k[2] + 1)
        elif k[0] == 'U': v, off = vB, UT_PAD + 512 * k[1] - 32 - 2 * k[2]
        elif k[0] == 'C': v, off = vC, CB + 1024 * k[1]
        elif k[0] == 'K2': v, off = vK, (K2Y if k[2] else K2X) + 4 * (64 - 16 * k[1])
        else: v, off = vK, K3 + 4 * (112 - 16 * k[1])
        a(f"ds_read_b128 v[{r}:{r+3}], v{v} offset:{off}"); nds[0] += 1; done_at[k] = nds[0]
    pend = []
    def add_pack(i, P, T):
        for q in range(4):
            def f(q=q):
                if q == 0: alloc(P)
                a(f"v_cvt_pk_bf16_f32 v{reg(P)+q}, v{reg(T[0])+q}, v{reg(T[1])+q}")
                if q == 3:
                    for x in T: free.append(slot.pop(x))
            pend.append([i + epilag + 1, f, 0, P])
    def add_tile(i, t):
        k = ('acc', t)
        def f1(): r = reg(k); a(f"v_cvt_pk_bf16_f32 v{r}, v{r}, v{r+1}")
        def f2(): r = reg(k); a(f"v_cvt_pk_bf16_f32 v{r+1}, v{r+2}, v{r+3}")
        def f3():
            r = reg(k); a(f"ds_write_b64 v{vW}, v[{r}:{r+1}] offset:{512*t}"); nds[0] += 1
            if t in sig:
                a(f"s_mov_b64 exec, 1\nds_add_u32 v{vZ}, v{vOne} offset:{sig[t]}\ns_mov_b64 exec, -1"); nds[0] += 1
            free.append(slot.pop(k))
        pend.extend([[i + epilag + 1, f1, 0, None], [i + epilag + 1, f2, 0, None], [i + epilag + 2, f3, 1, None]])
    pk = {i: (P, T) for i, P, T in packs}
    te = {i: t for t, i in tile_end.items()}
    reserve = 2
    qi = 0; extra = 0
    a(".p2align 3")
    for i, m in enumerate(mf):
        n = 0; nv = 0
        while any(p[3] in (m[1], m[2]) for p in pend if p[3]):
            p = pend.pop(0); p[1](); n += p[2]; nv += 1
        while pend and pend[0][0] <= i and nv < valu_per_gap:
            p = pend.pop(0); p[1](); n += p[2]; nv += 1
            if p[2]: break
        while qi < len(order):
            k = order[qi]
            must = firstuse[k] <= i
            room = nds[0] - waited[0] <= maxout and len(free) > reserve
            want = room and ((n == 0 and nv < 2 and firstuse[k] <= i + look) or (n < 2 and firstuse[k] <= i + lead // 2) or (i == 0 and firstuse[k] <= lead))
            if not (must or want): break
            load(k); qi += 1; n += 1
        extra += max(0, n - 1)
        need = max([done_at[k] for k in (m[1], m[2]) if k in done_at] + [0])
        if need > waited[0]:
            assert nds[0] - need <= 15
            a(f"s_waitcnt lgkmcnt({nds[0] - need})"); waited[0] = need
        if m[3]: alloc(m[0])
        d = reg(m[0]); ra = reg(m[1]); rb = reg(m[2])
        c = '0' if m[3] else f"v[{d}:{d+3}]"
        a(f"v_mfma_f32_16x16x32_bf16 v[{d}:{d+3}], v[{ra}:{ra+3}], v[{rb}:{rb+3}], {c}")
        for k in (m[1], m[2]):
            if k[0] != 'R' and last[k] == i and k in slot: free.append(slot.pop(k))
        if i in pk: add_pack(i, *pk[i])
        if i in te: add_tile(i, te[i])
    for p in pend: p[1]()
    return dict(n=len(mf), extra=extra, minfree=minfree[0], nds=nds[0], ends=tile_end)

if __name__ == '__main__':
    from asmlib import A
    a = A()
    print(conv2_stream(a, 4, 5, 6, 7, 3, 2, {2: 40, 5: 44, 6: 48, 7: 52}, 480, 8, 72, 76, 80, 22, 0, 1280, 2560, 0))
    import hazard
    l = hazard.fix(a.l, verbose=True)
    print(len(l), sum('s_waitcnt' in x for x in l))
```

```python
import sys
from asmlib import *
import hazard
from conv2 import conv2_stream

WS_RT, WS_GT, WS_H2, WS_H3, WS_ST = 0x1000, 0x3000, 0x10000, 0x100000, 0xF00000
H3S = 8192 + 128
F_PUB, F_POLL, F_UT, F_TK, F_P, F_H, F_H2P, L_TAG = 0, 4, 8, 16, 24, 28, 12, 32
L_GM, L_LIST, L_SEL, L_RK, L_GK, L_DUM, F_T = 64, 128, 256, 320, 352, 300, 384
L_SCR = 1024; SCR_S = 8768; SCR_W = 544
TAB_O = 5184
E1A, E0A = 0, 1220
L_KA = L_SCR + 8 * SCR_S; KA_S = 4096
K2X, K2Y, K3A = 0, 1280, 2560
L_UT = L_KA + 8 * KA_S; UT_W = 4672; UT_PAD = 480
L_G = L_UT + 8 * UT_W
L_CB = L_G + 4096
LDS_BYTES = L_CB + 5 * 1024
L_XS = 1024
L_P = L_XS + 8 * 2048; P_T = 272; P_W = 8 * P_T
L_HS = L_P + 8 * P_W; HS_W = 160
TAGC = 0x9E3779B9
LOG2E = 0x3FB8AA3B
SPIN = 1 << 15
OOB = 0x1000000

DEF = dict(stamps=False, rownt='', wnt='nt', nA=3, nB=5, nC=4, nD=8, rdelay=20, h2delay=0, h3sleep=4, h3at=6,
           esleep=2, eprio0=3, eprio=1, sprio=(0, 0), cprio=(0, 0), lead=6, look=14, epilag=4, pt2=False, slowc=3, kbar=True, pfw2=True, groups=None)

def gen(**kw):
    o = dict(DEF); o.update(kw)
    a = A()
    vZ, vOne = 3, 2
    groups = o['groups'] or tuple((t,) for t in range(8))
    sig = {g[-1]: F_T + 4 * g[-1] for g in groups}
    RED = ('quad_perm:[1,0,3,2] row_mask:0xf', 'quad_perm:[2,3,0,1] row_mask:0xf', 'row_half_mirror row_mask:0xf', 'row_mirror row_mask:0xf',
           'row_bcast:15 row_mask:0xa', 'row_bcast:31 row_mask:0xc')
    def stamp(i):
        if o['stamps']: a(f"s_memrealtime s[{64+2*i}:{65+2*i}]\ns_waitcnt lgkmcnt(0)")
    def cstamp(i):
        if o['stamps']: a(f"s_memtime s[{64+2*i}:{65+2*i}]\ns_waitcnt lgkmcnt(0)")
    def finish():
        a("s_branch L_FIN" if o['stamps'] else "s_endpgm")
    def signal(f):
        a(f"s_mov_b64 exec, 1\nds_add_u32 v{vZ}, v{vOne} offset:{f}\ns_mov_b64 exec, -1")
    def lwait(f, n, vt, extra='', sleep=1, sc='s62'):
        L = a.lab('W'); D = a.lab('WD')
        a(f"""
        s_mov_b32 {sc}, 0
        {L}:
        ds_read_b32 v{vt}, v{vZ} offset:{f}
        {extra}
        s_add_u32 {sc}, {sc}, 1
        s_waitcnt lgkmcnt(0)
        v_cmp_le_u32 vcc, {n}, v{vt}
        s_cbranch_vccnz {D}
        """)
        if sleep: a(f"s_sleep {sleep}")
        a(f"s_cmp_lt_u32 {sc}, {SPIN * 64}\ns_cbranch_scc1 {L}\n{D}:")
    def selwait(vd, va, sleep, extra='', vd2=None):
        L = a.lab('SW'); D = a.lab('SD')
        a(f"s_mov_b32 s62, 0\n{L}:\nds_read_b32 v{vd}, v{va} offset:{L_SEL}")
        if vd2: a(f"ds_read_b32 v{vd2}, v{va} offset:{L_SEL + 16}")
        a(f"s_add_u32 s62, s62, 1\ns_waitcnt lgkmcnt(0)")
        if vd2: a(f"v_min_u32 v10, v{vd}, v{vd2}\nv_cmp_eq_u32 vcc, 0, v10")
        else: a(f"v_cmp_eq_u32 vcc, 0, v{vd}")
        a(f"{extra}\ns_cbranch_vccz {D}\ns_sleep {sleep}\ns_cmp_lt_u32 s62, {SPIN * 64}\ns_cbranch_scc1 {L}\n{D}:")
    def gpoll(loads, tags, vt, sleep, cnt='s62', mid='', between=None):
        L = a.lab('P'); D = a.lab('PD'); C = a.lab('PC')
        a(f"s_mov_b32 {cnt}, 0")
        if between is not None:
            a(loads); between(); a(f"s_branch {C}")
        a(f"{L}:\n{loads}\n{C}:\ns_add_u32 {cnt}, {cnt}, 1\ns_waitcnt vmcnt(0)")
        a(f"v_xor_b32 v{vt}, {tags[0][1]}, v{tags[0][0]}")
        for t, e in tags[1:]: a(f"v_bitop3_b32 v{vt}, v{t}, {e}, v{vt} bitop3:0xbe")
        a(f"v_cmp_ne_u32 vcc, 0, v{vt}\n{mid}\ns_cbranch_vccz {D}")
        if sleep: a(f"s_sleep {sleep}")
        a(f"s_cmp_lt_u32 {cnt}, {SPIN}\ns_cbranch_scc1 {L}\n{D}:")
    K = list(range(20, 28))
    def topk_prep():
        a(f"""
        s_lshl_b32 s41, s38, 11
        v_add_u32 v59, s41, v8
        v_lshrrev_b32 v60, 2, v59
        v_or_b32 v60, 0x8000, v60
        """)
        for j in range(1, 8): a(f"v_add_u32 v{60+j}, {(j & 3) + 256 * (j >> 2)}, v60")
        a(f"""
        s_lshl_b32 s41, s38, 4
        v_lshl_add_u32 v40, v11, 2, s41
        v_and_b32 v41, 15, v1
        v_lshlrev_b32 v41, 2, v41
        v_lshlrev_b32 v42, 4, v11
        s_lshl_b32 s42, s38, 5
        s_add_u32 s51, s42, 28
        v_and_b32 v43, 7, v1
        v_lshl_add_u32 v43, v43, 2, s42
        v_lshrrev_b32 v44, 3, v1
        v_lshlrev_b32 v44, 4, v44
        v_mov_b32 v45, {L_DUM - L_LIST}
        v_mov_b32 v46, {L_DUM - L_SEL}
        s_mov_b32 s50, {WS_RT}
        """)
    topk_keys = ''.join(f"v_lshl_or_b32 v{K[2*j]}, v{12+2*j}, 16, v{60+2*j}\nv_and_or_b32 v{K[2*j+1]}, v{12+2*j}, s48, v{61+2*j}\n" for j in range(4))
    rt_loads = "buffer_load_dwordx4 v[12:15], v59, s[8:11], s50 offen sc1\nbuffer_load_dwordx4 v[16:19], v59, s[8:11], s50 offen offset:1024 sc1\n"
    def topk(X):
        t3 = [f"v_max3_u32 v32, v{K[0]}, v{K[1]}, v{K[2]}", f"v_med3_u32 v33, v{K[0]}, v{K[1]}, v{K[2]}", f"v_min3_u32 v34, v{K[0]}, v{K[1]}, v{K[2]}"]
        for j in range(3, 8):
            t3 += [f"v_med3_u32 v34, v33, v34, v{K[j]}", f"v_med3_u32 v33, v32, v33, v{K[j]}", f"v_max_u32 v32, v32, v{K[j]}"]
        a(t3.pop(0))
        a(f"v_max3_u32 v31, v{K[3]}, v{K[4]}, v{K[5]}\nv_max3_u32 v30, v32, v{K[6]}, v{K[7]}\nv_max_u32 v30, v30, v31")
        for ctl in RED[:4]:
            a(t3.pop(0)); a(t3.pop(0))
            a(f"v_max_u32_dpp v30, v30, v30 {ctl} bank_mask:0xf")
        a(f"ds_write_b32 v40, v30 offset:{L_GM}\nds_read_b32 v35, v41 offset:{L_GM}\nds_read_b128 v[36:39], v42 offset:{L_GM}")
        while t3: a(t3.pop(0))
        cnt4 = f"""
        v_cmp_gt_u32 s[52:53], v36, v35
        v_cmp_gt_u32 s[54:55], v37, v35
        v_cmp_gt_u32 s[56:57], v38, v35
        v_cmp_gt_u32 s[58:59], v39, v35
        v_addc_co_u32 v29, s[60:61], 0, v{vZ}, s[52:53]
        v_addc_co_u32 v29, s[60:61], 0, v29, s[54:55]
        v_addc_co_u32 v29, s[60:61], 0, v29, s[56:57]
        v_addc_co_u32 v29, s[60:61], 0, v29, s[58:59]
        """
        fold = """
        v_mov_b32 v36, v29
        v_permlane32_swap_b32 v29, v36
        v_add_u32 v29, v29, v36
        v_mov_b32 v36, v29
        v_permlane16_swap_b32 v29, v36
        v_add_u32 v29, v29, v36
        """
        a(f"""
        s_mov_b32 s62, 0
        L_GMW{X}:
        s_waitcnt lgkmcnt(0)
        v_cmp_eq_u32 vcc, 0, v35
        {cnt4}
        s_cbranch_vccz L_GMD{X}
        ds_read_b32 v35, v41 offset:{L_GM}
        ds_read_b128 v[36:39], v42 offset:{L_GM}
        s_add_u32 s62, s62, 1
        s_cmp_lt_u32 s62, {SPIN*64}
        s_cbranch_scc1 L_GMW{X}
        s_waitcnt lgkmcnt(0)
        L_GMD{X}:
        {fold}
        v_cmp_eq_u32 vcc, 7, v29
        s_ff1_i32_b64 s41, vcc
        s_and_b32 s41, s41, 63
        v_readlane_b32 s41, v35, s41
        v_cmp_le_u32 s[52:53], s41, v32
        v_cmp_le_u32 s[54:55], s41, v33
        v_cmp_le_u32 vcc, s41, v34
        v_mbcnt_lo_u32_b32 v36, s52, 0
        v_mbcnt_lo_u32_b32 v37, s54, 0
        v_mbcnt_hi_u32_b32 v36, s53, v36
        v_mbcnt_hi_u32_b32 v37, s55, v37
        v_min_u32 v36, 7, v36
        v_min_u32 v37, 7, v37
        v_lshl_add_u32 v36, v36, 2, s42
        v_lshlrev_b32 v37, 2, v37
        v_sub_u32 v37, s51, v37
        v_cndmask_b32 v36, v45, v36, s[52:53]
        v_cndmask_b32 v37, v45, v37, s[54:55]
        ds_write_b32 v36, v32 offset:{L_LIST}
        ds_write_b32 v37, v33 offset:{L_LIST}
        s_cbranch_vccnz L_TKF{X}
        s_bcnt1_i32_b64 s52, s[52:53]
        s_bcnt1_i32_b64 s54, s[54:55]
        s_add_u32 s52, s52, s54
        s_cmp_le_u32 s52, 8
        s_cbranch_scc1 L_TKP{X}
        L_TKF{X}:
        s_mov_b32 s41, 0
        L_TKFL{X}:
        v_max3_u32 v30, v{K[0]}, v{K[1]}, v{K[2]}
        v_max3_u32 v30, v30, v{K[3]}, v{K[4]}
        v_max3_u32 v30, v30, v{K[5]}, v{K[6]}
        v_max_u32 v30, v30, v{K[7]}
        """)
        for ctl in RED: a(f"v_max_u32_dpp v30, v30, v30 {ctl} bank_mask:0xf")
        a(f"v_readlane_b32 s52, v30, 63\ns_mov_b32 m0, s41\ns_nop 0\nv_writelane_b32 v29, s52, m0")
        for j in range(8): a(f"v_cmp_ne_u32 vcc, s52, v{K[j]}\nv_cndmask_b32 v{K[j]}, 0, v{K[j]}, vcc")
        a(f"""
        s_add_u32 s41, s41, 1
        s_cmp_lt_u32 s41, 8
        s_cbranch_scc1 L_TKFL{X}
        s_mov_b64 exec, 0xff
        ds_write_b32 v43, v29 offset:{L_LIST}
        s_mov_b64 exec, -1
        L_TKP{X}:
        s_mov_b64 exec, 1
        ds_add_u32 v{vZ}, v{vOne} offset:{F_TK}
        s_mov_b64 exec, -1
        s_mov_b32 s62, 0
        L_TKW{X}:
        ds_read_b32 v28, v{vZ} offset:{F_TK}
        ds_read_b32 v35, v43 offset:{L_LIST}
        ds_read_b128 v[36:39], v44 offset:{L_LIST}
        s_add_u32 s62, s62, 1
        s_waitcnt lgkmcnt(0)
        v_cmp_le_u32 vcc, 4, v28
        {cnt4}
        s_cbranch_vccnz L_TKD{X}
        s_cmp_lt_u32 s62, {SPIN*64}
        s_cbranch_scc1 L_TKW{X}
        L_TKD{X}:
        s_nop 0
        v_add_u32_dpp v29, v29, v29 row_ror:8 row_mask:0xf bank_mask:0xf
        {fold}
        v_cmp_gt_u32 vcc, 8, v29
        v_lshlrev_b32 v29, 2, v29
        v_cndmask_b32 v29, v46, v29, vcc
        ds_write_b32 v29, v35 offset:{L_SEL}
        """)

    nt = o['rownt']
    a(f"""
    s_cmp_ge_u32 s2, 256
    s_cbranch_scc1 L_END
    s_getpc_b64 s[48:49]
    L_PC:
    s_lshr_b32 s40, s2, 3
    s_lshl_b32 s41, s40, 10
    v_lshl_add_u32 v9, v0, 1, s41
    v_min_u32 v9, L_END-L_PC, v9
    global_load_ushort v163, v9, s[48:49]
    s_load_dwordx8 s[16:23], s[0:1], 8
    s_load_dwordx4 s[24:27], s[0:1], 40
    s_load_dwordx2 s[4:5], s[0:1], 0
    s_load_dwordx2 s[8:9], s[0:1], 120
    s_load_dwordx8 s[28:35], s[0:1], 64
    s_load_dwordx2 s[36:37], s[0:1], 96
    s_load_dwordx4 s[12:15], s[0:1], 104
    v_readfirstlane_b32 s3, v0
    v_and_b32 v1, 63, v0
    v_mov_b32 v{vZ}, 0
    v_mov_b32 v{vOne}, 1
    v_lshlrev_b32 v8, 4, v1
    s_mov_b32 s6, 0x400000
    s_mov_b32 s7, 0x20000
    s_mov_b32 s10, {OOB}
    s_mov_b32 s11, 0x20000
    s_lshr_b32 s3, s3, 6
    s_and_b32 s41, s2, 7
    s_lshr_b32 s40, s2, 4
    """)
    if o['stamps']:
        for i in range(16): a(f"s_mov_b64 s[{64+2*i}:{65+2*i}], 0")
        stamp(0)
    a(f"""
    s_bitcmp1_b32 s2, 3
    s_cbranch_scc1 L_MOE
    s_lshl_b32 s39, s41, 4
    s_add_u32 s39, s39, s40
    s_cmp_ge_u32 s3, 8
    s_cbranch_scc1 L_E0
    s_lshl_b32 s41, s39, 3
    s_add_u32 s41, s41, s3                ; d
    s_lshl_b32 s42, s41, 8
    v_lshl_add_u32 v4, v1, 2, s42
    s_lshl_b32 s42, s41, 1
    v_mov_b32 v5, s42
    v_mov_b32 v12, 0
    v_mov_b32 v13, 0
    s_waitcnt lgkmcnt(0)
    global_load_short_d16_hi v12, v5, s[24:25]
    global_load_dword v8, v4, s[16:17]
    global_load_dword v9, v4, s[18:19]
    global_load_dword v10, v4, s[20:21]
    global_load_dword v11, v4, s[22:23]
    global_load_short_d16_hi v13, v5, s[26:27]
    s_barrier
    s_branch L_S
    L_MOE:
    s_lshl_b32 s39, s40, 3
    s_add_u32 s39, s39, s41
    s_cmp_ge_u32 s3, 4
    s_cbranch_scc1 L_M0
    s_setprio 3
    s_lshl_b32 s41, s39, 15
    s_lshl_b32 s42, s3, 13
    s_add_u32 s41, s41, s42
    s_add_u32 s42, s41, 4096
    s_waitcnt lgkmcnt(0)
    """)
    RW = 72
    for i in range(8):
        a(f"buffer_load_dwordx4 v[{RW+4*i}:{RW+4*i+3}], v8, s[4:7], {'s41' if i < 4 else 's42'} offen offset:{1024*(i%4)} {nt}")
    a(f"""
    global_load_dwordx4 v[104:107], v8, s[28:29]
    global_load_dwordx4 v[108:111], v8, s[28:29] offset:1024
    global_load_dwordx4 v[112:115], v8, s[36:37]
    global_load_dwordx4 v[116:119], v8, s[36:37] offset:1024
    buffer_load_dword v49, off, s[8:11], 0 sc1
    s_barrier
    s_branch L_R
    """)
    UR = 72
    a(f"""
    L_E0:
    s_setprio {o['eprio0']}
    v_mov_b32 v4, 0
    v_mov_b32 v5, 0
    v_mov_b32 v6, 0
    v_mov_b32 v7, 0
    ds_write_b128 v8, v[4:7]
    s_and_b32 s38, s3, 3
    v_and_b32 v56, 255, v0
    v_lshlrev_b32 v9, 14, v56
    s_lshl_b32 s41, s39, 4
    v_add_u32 v9, s41, v9
    s_and_b32 s43, s40, 7
    s_waitcnt lgkmcnt(0)
    s_movk_i32 s16, 0x1000
    s_movk_i32 s17, 0x2000
    s_movk_i32 s18, 0x3000
    s_barrier
    """)
    def uload(j):
        so = ('0', 's16', 's17', 's18')[j >> 1]
        a(f"buffer_load_dwordx4 v[{UR+4*j}:{UR+4*j+3}], v9, s[4:7], {so} offen offset:{2048*(j&1)}")
    for j in range(8):
        L = a.lab('U'); a(f"s_cmp_lg_u32 s43, {j}\ns_cbranch_scc1 {L}"); uload(j); a(f"{L}:")
    a(f"""
    s_mov_b64 s[20:21], s[14:15]
    s_mov_b32 s14, 0x400000
    s_mov_b32 s15, 0x20000
    s_mov_b32 s48, 0xffff0000
    v_bfe_u32 v10, v1, 2, 2               ; r = (l>>2)&3
    v_lshrrev_b32 v11, 4, v1              ; gamma
    v_and_b32 v50, 3, v1                  ; c4
    v_lshlrev_b32 v51, 5, v11
    v_lshl_add_u32 v51, v50, 3, v51
    s_lshl_b32 s41, s38, 7
    v_add_u32 v51, s41, v51               ; (64e + 16*gamma + 4*c4)*2
    v_mul_u32_u24 v54, {SCR_S}, v10
    v_add_u32 v54, v54, v51
    v_add_u32 v54, {L_SCR}, v54
    v_mul_u32_u24 v55, {UT_W}, v10
    v_add_u32 v55, v55, v51
    v_add_u32 v55, {L_UT + UT_PAD}, v55
    v_lshlrev_b32 v57, 1, v56
    v_add_u32 v57, {L_G}, v57
    v_lshlrev_b32 v58, 11, v56
    s_lshl_b32 s41, s39, 4
    v_add_u32 v58, s41, v58
    v_lshlrev_b32 v52, 4, v56
    v_add_u32 v52, {L_UT + UT_PAD}, v52
    s_mov_b32 s22, 0x05040100
    s_mov_b32 s23, 0x07060302
    s_mov_b32 s24, 0x07c03800
    s_mov_b32 s25, 0x0fe00038
    s_lshl_b32 s41, s38, 4
    s_lshr_b64 s[24:25], s[24:25], s41
    s_and_b32 s24, s24, 0xffff
    s_mov_b32 s25, 0x1ff0
    s_mov_b32 s26, 0x10001
    s_lshl_b32 s41, s38, 10
    s_add_u32 s41, s41, {L_CB}
    v_lshlrev_b32 v12, 3, v11
    v_and_b32 v13, 15, v1
    v_add_u32 v14, s41, v8
    v_add_u32 v15, {L_CB + 4096}, v8
    """)
    for k in range(2):
        a(f"v_lshlrev_b32 v16, v13, s{24+k}\nv_lshrrev_b32 v16, v12, v16")
        for q in range(4):
            a(f"v_bfe_u32 v17, v16, {2*q}, 2\nv_lshl_or_b32 v17, v17, 15, v17\nv_and_b32 v17, s26, v17\nv_mul_u32_u24 v{20+q}, 0x3f80, v17")
        a(f"ds_write_b128 v{14+k}, v[20:23]")
    topk_prep()
    a(f"""
    v_lshrrev_b32 v53, 1, v59
    v_add_u32 v53, {L_G}, v53
    s_mov_b32 s19, {WS_GT}
    s_and_b32 s41, s2, 7
    s_lshl_b32 s24, s40, 3
    s_add_u32 s24, s24, s41
    s_lshr_b32 s41, s24, 1
    s_mul_i32 s25, s41, 37
    s_lshr_b32 s25, s25, 8
    s_mul_i32 s26, s25, 7
    s_sub_u32 s26, s41, s26
    s_lshl_b32 s25, s25, 3
    s_add_u32 s25, s25, s26
    s_cmp_ge_u32 s26, {o['slowc']}
    s_addc_u32 s25, s25, 0
    s_sub_u32 s41, s41, 49
    s_lshr_b32 s26, s41, 1
    s_lshl_b32 s26, s26, 3
    s_add_u32 s26, s26, {o['slowc']}
    s_lshl_b32 s41, s41, 6
    s_and_b32 s41, s41, 64
    s_add_u32 s26, s26, s41
    s_cmp_ge_u32 s24, 98
    s_cselect_b32 s25, s26, s25
    s_lshl_b32 s27, s25, 17
    s_and_b32 s24, s24, 1
    s_lshl_b32 s24, s24, 10
    s_add_u32 s27, s27, s24
    s_mov_b32 s28, s34
    s_mov_b32 s29, s35
    s_mov_b32 s30, 7340032
    s_mov_b32 s31, 0x20000
    v_lshrrev_b32 v70, 2, v56
    v_lshlrev_b32 v70, 11, v70
    v_lshl_add_u32 v70, v50, 7, v70
    s_waitcnt vmcnt(0)
    """)
    stamp(1)
    for j in range(8):
        L = a.lab('U'); a(f"s_cmp_eq_u32 s43, {j}\ns_cbranch_scc1 {L}"); uload(j); a(f"{L}:")
    UO = 104
    def transpose():
        a("s_waitcnt vmcnt(0)")
        stamp(2)
        for d in range(8):
            for p in range(4):
                a(f"v_perm_b32 v{UO+4*d+p}, v{UR+8*p+4+(d>>1)}, v{UR+8*p+(d>>1)}, s{22+(d&1)}")
            if d % 2:
                for dd in (d - 1, d): a(f"ds_write_b128 v52, v[{UO+4*dd}:{UO+4*dd+3}] offset:{dd*UT_W}")
        signal(F_UT)
        stamp(3)
    transpose()
    def touch():
        if not o['pfw2']: return
        a("buffer_load_dword v47, v70, s[28:31], s27 offen\nbuffer_load_dword v47, v70, s[28:31], s27 offen offset:512")
    gpoll(rt_loads + "buffer_load_dwordx4 v[136:139], v59, s[8:11], s19 offen sc1\nbuffer_load_dwordx4 v[140:143], v59, s[8:11], s19 offen offset:1024 sc1\n"
          f"global_load_dwordx2 v[48:49], v{vZ}, s[20:21] sc1",
          [(48, '1')] + [(r, 'v49') for r in (13, 15, 17, 19, 137, 139, 141, 143)], 28, 4, mid=topk_keys)
    touch()
    stamp(4)
    if o['stamps']: a("s_mov_b32 s92, s62")
    a(f"ds_write2_b32 v53, v136, v138 offset0:0 offset1:1\nds_write2_b32 v53, v140, v142 offset0:128 offset1:129\ns_setprio {o['eprio']}")
    topk('E')
    a("v_and_b32 v43, 7, v1\nv_lshlrev_b32 v43, 2, v43")
    selwait(34, 43, 1)
    stamp(5)
    a(f"""
    v_and_b32 v21, 2047, v34
    v_lshrrev_b32 v38, 1, v21
    v_lshlrev_b32 v38, 2, v38
    v_add_u32 v38, {L_G}, v38
    v_and_b32 v37, 1, v21
    v_lshlrev_b32 v37, 4, v37
    v_mov_b32 v39, 0x8000
    v_lshlrev_b32 v39, v37, v39
    s_brev_b32 s50, 1
    s_mov_b64 exec, 0xff
    ds_or_b32 v38, v39
    s_mov_b64 exec, -1
    """)
    CU, GG, AD = 72, 136, 144
    def prep_reads(t):
        u = CU + 8 * t
        a(f"""
        v_mov_b32 v{GG+t}, 0
        ds_read_b64_tr_b16 v[{u+2}:{u+3}], v55 offset:{512*t}
        ds_read_b64_tr_b16 v[{u+6}:{u+7}], v55 offset:{512*t + 4*UT_W}
        ds_read_u16_d16_hi v{GG+t}, v57 offset:{512*t}
        """)
    def prep_math(t):
        for u in (CU + 8 * t, CU + 8 * t + 4):
            a(f"v_lshlrev_b32 v{u}, 16, v{u+2}\nv_and_b32 v{u+1}, s48, v{u+2}\nv_lshlrev_b32 v{u+2}, 16, v{u+3}\nv_and_b32 v{u+3}, s48, v{u+3}")
            for q in range(4): a(f"v_fma_f32 v{u+q}, -v{GG+t}, v{u+q}, v{u+q}")
        a(f"v_and_or_b32 v{AD+t}, v{GG+t}, s50, v58")
    for t in range(8): prep_reads(t)
    a(f"""
    v_ashrrev_i32 v22, 31, v34
    v_not_b32 v22, v22
    v_or_b32 v22, 0x80000000, v22
    v_xor_b32 v20, v34, v22
    v_and_b32 v20, s48, v20
    v_mul_f32 v20, 0xbfb8aa3b, v20
    v_exp_f32 v20, v20
    v_lshrrev_b32 v17, 1, v11
    v_and_b32 v18, 1, v11
    v_lshl_or_b32 v17, v18, 1, v17
    s_lshl_b32 s41, s38, 2
    v_add_u32 v17, s41, v17
    v_add_f32 v20, 1.0, v20
    v_rcp_f32 v20, v20
    v_lshlrev_b32 v22, 1, v21
    v_mul_u32_u24 v23, {SCR_S}, v17
    v_add_u32 v23, v23, v22
    v_add_u32 v23, {L_SCR}, v23
    v_mul_u32_u24 v18, {UT_W}, v17
    v_add_u32 v18, v18, v22
    v_add_u32 v18, {L_UT + UT_PAD}, v18
    v_add_u32 v22, {L_G}, v22
    v_lshlrev_b32 v21, 11, v21
    v_lshl_add_u32 v21, v17, 1, v21
    s_lshl_b32 s41, s39, 4
    v_add_u32 v21, s41, v21
    s_lshl_b32 s44, s39, 1
    s_add_u32 s44, s44, s38
    s_mul_i32 s44, s44, {H3S}
    s_add_u32 s44, s44, {WS_H3}
    s_cmp_lt_u32 s38, 2
    s_cselect_b32 s44, s44, {OOB}
    s_add_u32 s45, s44, 4096
    s_mov_b32 s46, 0x0c04000c
    s_mov_b32 s47, 0x04020100
    s_waitcnt lgkmcnt(0)
    """)
    Y = 24
    YR = [24, 28, 32, 36, 40, 44, 60]
    h3loads = '\n'.join(f"buffer_load_dwordx4 v[{YR[k]}:{YR[k]+3}], v8, s[8:11], {'s44' if k < 4 else 's45'} offen offset:{1024*(k%4)} sc1" for k in range(7))
    for gi, g in enumerate(groups):
        for t in g: prep_math(t)
        AR = 152 + 8 * (gi & 1)
        assert len(g) <= 2
        rd = ''.join(f"ds_read_b64_tr_b16 v[{AR+4*k}:{AR+4*k+1}], v54 offset:{512*t}\nds_read_b64_tr_b16 v[{AR+4*k+2}:{AR+4*k+3}], v54 offset:{512*t + 4*SCR_S}\n" for k, t in enumerate(g))
        if g[-1] == 7: lwait(sig[g[-1]], 8, 10, extra=rd, sleep=1)
        else:
            lwait(sig[g[-1]], 8, 10, sleep=o['esleep']); a(rd + "s_waitcnt lgkmcnt(0)")
        for k, t in enumerate(g):
            b = AR + 4 * k; u = CU + 8 * t
            for h in range(4):
                a(f"""
                v_lshlrev_b32 v68, 16, v{b+h}
                v_and_b32 v69, s48, v{b+h}
                v_fmac_f32 v{u+2*h}, v{GG+t}, v68
                v_fmac_f32 v{u+2*h+1}, v{GG+t}, v69
                v_cvt_pk_bf16_f32 v{b+h}, v{u+2*h}, v{u+2*h+1}
                """)
            a(f"s_mov_b32 s41, {t * 256 * 2048}\nbuffer_store_dwordx4 v[{b}:{b+3}], v{AD+t}, s[12:15], s41 offen")
            if t == o['h3at']: a(h3loads)
        if gi in (0, 3, 6, 7): stamp({0: 6, 3: 7, 6: 8, 7: 9}[gi])
    a(f"""
    s_cmp_ge_u32 s38, 2
    s_cbranch_scc1 L_EEND
    v_mov_b32 v4, 0
    v_mov_b32 v5, 0
    v_mov_b32 v6, 0
    ds_read_u16_d16_hi v4, v23
    ds_read_u16_d16_hi v5, v18
    ds_read_u16_d16_hi v6, v22
    s_mov_b32 s63, 0
    s_waitcnt vmcnt({7 - o['h3at']})
    s_branch L_H3C
    L_H3:
    {h3loads}
    s_waitcnt vmcnt(0)
    L_H3C:
    s_add_u32 s63, s63, 1
    v_xor_b32 v10, v{YR[0]+3}, v49
    """)
    for k in range(1, 7): a(f"v_bitop3_b32 v10, v{YR[k]+3}, v49, v10 bitop3:0xbe")
    a("v_cmp_ne_u32 vcc, 0, v10")
    for k in range(7):
        r = YR[k]
        a(f"v_perm_b32 v{r+3}, v{r+1}, v{r}, s46\nv_perm_b32 v{r+3}, v{r+2}, v{r+3}, s47")
        if k: a(f"v_pk_add_f32 v[{Y}:{Y+1}], v[{Y}:{Y+1}], v[{r}:{r+1}]\nv_pk_add_f32 v[{Y+2}:{Y+3}], v[{Y+2}:{Y+3}], v[{r+2}:{r+3}]")
    a(f"""
    s_cbranch_vccz L_H3D
    s_sleep {o['h3sleep']}
    s_cmp_lt_u32 s63, {SPIN}
    s_cbranch_scc1 L_H3
    L_H3D:
    s_nop 0
    """)
    stamp(10)
    if o['stamps']: a("s_mov_b32 s90, s63")
    a(f"""
    v_permlane32_swap_b32 v{Y}, v{Y+1}
    v_permlane32_swap_b32 v{Y+2}, v{Y+3}
    v_add_f32 v{Y}, v{Y}, v{Y+1}
    v_add_f32 v{Y+2}, v{Y+2}, v{Y+3}
    s_mov_b32 s42, 0x00ff00ff
    s_mov_b32 s43, 0x00ff00ff
    v_permlane16_swap_b32 v{Y}, v{Y+2}
    v_add_f32 v{Y}, v{Y}, v{Y+2}
    s_waitcnt lgkmcnt(0)
    v_add_f32_dpp v{Y}, v{Y}, v{Y} row_ror:8 row_mask:0xf bank_mask:0xf
    v_fma_f32 v5, v{Y}, v20, v5
    v_sub_f32 v4, v4, v5
    v_fma_f32 v4, |v6|, v4, v5
    v_cvt_pk_bf16_f32 v4, v4, v4
    s_mov_b64 exec, s[42:43]
    buffer_store_short v4, v21, s[12:15], 0 offen
    L_EEND:
    """)
    finish()

    wnt = o['wnt']; sc = o['slowc']
    a(f"""
    L_M0:
    s_setprio 2
    v_mov_b32 v4, 0
    v_mov_b32 v5, 0
    v_mov_b32 v6, 0
    v_mov_b32 v7, 0
    ds_write_b128 v8, v[4:7]
    s_sub_u32 s38, s3, 4                  ; m
    s_lshr_b32 s41, s39, 1                ; p
    s_mul_i32 s42, s41, 37
    s_lshr_b32 s42, s42, 8                ; p / 7
    s_mul_i32 s43, s42, 7
    s_sub_u32 s43, s41, s43               ; p % 7
    s_lshl_b32 s51, s42, 3
    s_add_u32 s51, s51, s43
    s_cmp_ge_u32 s43, {sc}
    s_addc_u32 s51, s51, 0
    s_sub_u32 s41, s41, 49
    s_lshr_b32 s42, s41, 1
    s_lshl_b32 s42, s42, 3
    s_add_u32 s42, s42, {sc}
    s_and_b32 s41, s41, 1
    s_cmp_ge_u32 s39, 98
    s_cselect_b32 s51, s42, s51           ; strip c
    s_cselect_b32 s50, s41, 0             ; K half
    s_cselect_b32 s63, 4, 8
    s_cmp_lt_u32 s38, s63
    s_cselect_b32 s58, 7340032, 0
    s_mov_b32 s59, 0x20000
    s_mov_b32 s46, 7340032
    s_mov_b32 s47, 0x20000
    s_lshl_b32 s41, s50, 2
    s_add_u32 s41, s41, s38
    s_and_b32 s61, s41, 7
    s_mul_i32 s52, s61, {128*7168}
    s_lshl_b32 s41, s51, 7
    s_add_u32 s52, s52, s41               ; W1 soffset
    v_and_b32 v15, 7, v1
    v_lshrrev_b32 v16, 3, v1              ; rr
    v_mul_u32_u24 v13, {8*7168}, v16
    v_lshl_add_u32 v13, v15, 4, v13       ; W1 voffset
    s_bitcmp1_b32 s39, 0
    s_waitcnt lgkmcnt(0)
    s_cselect_b32 s56, s32, s30
    s_cselect_b32 s57, s33, s31
    s_mov_b32 s44, s34
    s_mov_b32 s45, s35
    s_barrier
    s_cmp_ge_u32 s39, 126
    s_cbranch_scc1 L_MEND
    """)
    BA, BB, BC, ACC, XO, TG = 24, 56, 88, 120, 152, 161
    vm = []; known = [0]
    def vwait(tag):
        if vm.index(tag) < known[0]: return
        a(f"s_waitcnt vmcnt({len(vm) - 1 - vm.index(tag)})"); known[0] = vm.index(tag) + 1
    n1 = [0]; n2 = [0]
    def w1(n):
        for _ in range(min(n, 16 - n1[0])):
            k = n1[0]; r = (BB, BC)[k >> 3] + 4 * (k & 7)
            a(f"buffer_load_dwordx4 v[{r}:{r+3}], v13, s[56:59], s52 offen {wnt}\ns_add_u32 s52, s52, {7168 if k != 7 else 57*7168}")
            vm.append(('w1', k)); n1[0] += 1
    def w2(n):
        for _ in range(min(n, 16 - n2[0])):
            k = n2[0]; r = BA + 2 * k
            a(f"buffer_load_dwordx2 v[{r}:{r+1}], v14, s[44:47], s53 offen {wnt}")
            a(f"s_add_u32 s53, s53, {8*2048}" if k != 7 else f"s_sub_u32 s53, s53, {54*2048}")
            vm.append(('w2', k)); n2[0] += 1
    def perm1(s, p):
        src = (BB, BC)[s]; dst = (BA, BB)[s]
        vwait(('w1', 8 * s + 2 * p + 1))
        for e in range(8): a(f"v_perm_b32 v{dst+4*e+p}, v{src+8*p+4+(e>>1)}, v{src+8*p+(e>>1)}, s{54+(e&1)}")
    def perm2(s):
        src = BA + 16 * s; dst = BC + 16 * s
        vwait(('w2', 8 * s + 7))
        for e in range(4):
            for p in range(4): a(f"v_perm_b32 v{dst+4*e+p}, v{src+4*p+2+(e>>1)}, v{src+4*p+(e>>1)}, s{54+(e&1)}")
    w1(o['nA'])
    a(f"""
    v_and_b32 v11, 15, v1                 ; cq / n
    v_lshrrev_b32 v12, 4, v1              ; kc / q
    v_and_b32 v14, 1, v12
    v_lshlrev_b32 v14, 2, v14
    v_lshrrev_b32 v9, 1, v12
    v_add_lshl_u32 v14, v14, v9, 11
    v_lshl_add_u32 v14, v11, 3, v14       ; W2 voffset
    s_lshl_b32 s53, s51, 17
    s_and_b32 s60, s39, 1
    s_lshl_b32 s60, s60, 3
    s_add_u32 s60, s60, s38
    s_lshl_b32 s41, s60, 7
    s_add_u32 s53, s53, s41               ; W2 soffset
    s_mov_b32 s54, 0x05040100
    s_mov_b32 s55, 0x07060302
    s_lshl_b32 s22, s38, 11
    s_add_u32 s22, s22, {L_XS}
    v_lshlrev_b32 v9, 1, v15
    v_xor_b32 v9, v9, v16
    v_lshlrev_b32 v9, 4, v9
    v_lshl_add_u32 v9, v15, 8, v9
    v_xor_b32 v165, 128, v9
    v_add_u32 v164, s22, v9
    v_add_u32 v165, s22, v165
    v_lshlrev_b32 v16, 1, v12
    v_xor_b32 v16, v16, v11
    v_lshlrev_b32 v16, 4, v16
    v_xor_b32 v7, 128, v16                ; tokens 4-7
    s_lshl_b32 s23, s61, 8
    v_mul_u32_u24 v17, {P_T}, v15
    v_lshl_add_u32 v17, v12, 4, v17
    s_mul_i32 s41, s38, {P_W}
    s_add_u32 s41, s41, {L_P}
    v_add_u32 v17, s41, v17
    v_and_b32 v18, 255, v0
    v_lshrrev_b32 v19, 5, v18
    v_and_b32 v20, 31, v18
    v_mul_u32_u24 v21, {P_T}, v19
    v_lshl_add_u32 v21, v20, 3, v21
    v_add_u32 v21, {L_P}, v21
    v_mul_u32_u24 v22, {HS_W}, v19
    v_lshl_add_u32 v22, v20, 2, v22
    v_add_u32 v22, {L_HS}, v22
    v_mul_u32_u24 v23, {HS_W}, v15
    v_lshl_add_u32 v23, v12, 4, v23
    v_add_u32 v23, {L_HS}, v23
    v_lshlrev_b32 v18, 3, v18             ; H2 voffset
    s_lshl_b32 s49, s51, 13
    s_add_u32 s49, s49, {WS_H2}
    s_and_b32 s41, s39, 1
    s_lshl_b32 s48, s50, 1
    s_add_u32 s48, s48, s41
    s_lshl_b32 s48, s48, 11
    s_add_u32 s48, s48, s49
    s_add_u32 s16, s49, 4096
    s_cmp_eq_u32 s63, 4
    s_cselect_b32 s16, s16, {OOB}
    s_cselect_b32 s17, -1, 0
    s_mov_b32 s42, 0x00ff00ff
    s_mov_b32 s43, 0x00ff00ff
    v_mul_u32_u24 v19, {4*H3S}, v12
    v_lshl_add_u32 v19, v15, 4, v19       ; H3 voffset
    s_mul_i32 s61, s60, {16*H3S}
    s_lshl_b32 s41, s51, 7
    s_add_u32 s61, s61, s41
    s_add_u32 s61, s61, {WS_H3}
    v_lshlrev_b32 v9, 2, v12
    s_mov_b32 m0, s22
    s_add_u32 s24, s22, 1024
    s_cmp_eq_u32 s50, 0
    s_cselect_b32 s46, s46, 0
    """)
    stamp(1)
    lwait(F_PUB, 5, 10, extra=f"ds_read_b32 v{TG}, v{vZ} offset:{L_TAG}", sleep=1)
    stamp(8)
    w1(o['nB'])
    a(f"v_and_b32 v162, s17, v{TG}")
    if o['nC']:
        lwait(F_POLL, 4, 10, sleep=1)
        w1(o['nC'])
    done0 = 0
    while done0 < 4 and 2 * done0 + 1 < o['nA'] + o['nB']: perm1(0, done0); done0 += 1
    stamp(9)
    selwait(4, 9, 1, vd2=5, extra="v_and_b32 v4, 2047, v4\nv_and_b32 v5, 2047, v5\nv_lshl_add_u32 v4, v4, 11, v16\nv_lshl_add_u32 v5, v5, 11, v7")
    a("buffer_load_dwordx4 v4, s[4:7], s23 offen lds\ns_mov_b32 m0, s24\ns_nop 0\nbuffer_load_dwordx4 v5, s[4:7], s23 offen lds")
    vm.append(('x', 0)); vm.append(('x', 1))
    stamp(2)
    w1(16)
    while done0 < 4: perm1(0, done0); done0 += 1
    done1 = 0
    while done1 < 4 and vm.index(('w1', 9 + 2 * done1)) < vm.index(('x', 1)): perm1(1, done1); done1 += 1
    vwait(('x', 1))
    a(f"ds_read_b128 v[{XO}:{XO+3}], v164\nds_read_b128 v[{XO+4}:{XO+7}], v165\ns_waitcnt lgkmcnt(0)")
    stamp(10)
    for e in range(8): a(f"v_mfma_f32_16x16x32_bf16 v[{ACC+4*e}:{ACC+4*e+3}], v[{BA+4*e}:{BA+4*e+3}], v[{XO}:{XO+3}], 0")
    w2(o['nD'])
    while done1 < 4: perm1(1, done1); done1 += 1
    stamp(11)
    for e in (0, 4, 1, 5, 2, 6, 3, 7): a(f"v_mfma_f32_16x16x32_bf16 v[{ACC+4*e}:{ACC+4*e+3}], v[{BB+4*e}:{BB+4*e+3}], v[{XO+4}:{XO+7}], v[{ACC+4*e}:{ACC+4*e+3}]")
    for e in range(4):
        for i in range(4): a(f"v_permlane32_swap_b32 v{ACC+4*e+i}, v{ACC+16+4*e+i}")
        for i in range(4): a(f"v_add_f32_dpp v{ACC+4*e+i}, v{ACC+16+4*e+i}, v{ACC+4*e+i} row_ror:8 row_mask:0xf bank_mask:0xf")
    a("s_mov_b64 exec, s[42:43]")
    for e in range(4): a(f"ds_write_b128 v17, v[{ACC+4*e}:{ACC+4*e+3}] offset:{64*e}")
    signal(F_P)
    a("s_cmp_ge_u32 s38, 4\ns_cbranch_scc1 L_M1")
    PR = ACC + 16
    ex = '\n'.join(f"ds_read_b64 v[{PR+2*w}:{PR+2*w+1}], v21 offset:{P_W*w}" for w in range(8))
    lwait(F_P, 8, 10, extra=ex, sleep=0)
    for d, s_ in ((0, 1), (2, 3), (4, 5), (6, 7), (0, 2), (4, 6), (0, 4)):
        a(f"v_pk_add_f32 v[{PR+2*d}:{PR+2*d+1}], v[{PR+2*d}:{PR+2*d+1}], v[{PR+2*s_}:{PR+2*s_+1}]")
    a(f"v_cvt_pk_bf16_f32 v{TG-1}, v{PR}, v{PR+1}\nbuffer_store_dwordx2 v[{TG-1}:{TG}], v18, s[8:11], s48 offen sc1")
    if o['nD'] < 16: signal(F_H2P)
    stamp(3)
    a("L_M1:\ns_cmp_lg_u32 s50, 0\ns_cbranch_scc1 L_MEND")
    if o['nD'] < 16:
        lwait(F_H2P, 4, 10, sleep=1)
        w2(16)
    FB = ACC; FP = BB
    for i in range(4): a(f"v_mov_b32 v{FP+4*i+3}, v{TG}")
    a("s_mov_b32 s18, 0x07060501\ns_mov_b32 s19, 0x07060502\ns_mov_b32 s20, 0x07060503\ns_mov_b32 s21, 0xffff0000")
    a("s_cmp_ge_u32 s38, 4\ns_cbranch_scc1 L_M2")
    H = PR; HU = PR + 8
    if o['h2delay']: a(f"s_sleep {o['h2delay']}")
    gpoll(f"""buffer_load_dwordx2 v[{H}:{H+1}], v18, s[8:11], s49 offen sc1
    buffer_load_dwordx2 v[{H+2}:{H+3}], v18, s[8:11], s49 offen offset:2048 sc1
    buffer_load_dwordx2 v[{H+4}:{H+5}], v18, s[8:11], s16 offen sc1
    buffer_load_dwordx2 v[{H+6}:{H+7}], v18, s[8:11], s16 offen offset:2048 sc1""", [(H+1, f'v{TG}'), (H+3, f'v{TG}'), (H+5, 'v162'), (H+7, 'v162')], 10, 0,
          mid='\n'.join(f"v_lshlrev_b32 v{HU+2*k}, 16, v{H+2*k}\nv_and_b32 v{HU+2*k+1}, s21, v{H+2*k}" for k in range(4)))
    stamp(4)
    if o['stamps']: a("s_mov_b32 s92, s62")
    a(f"""
    v_pk_add_f32 v[{HU}:{HU+1}], v[{HU}:{HU+1}], v[{HU+4}:{HU+5}]
    v_pk_add_f32 v[{HU+2}:{HU+3}], v[{HU+2}:{HU+3}], v[{HU+6}:{HU+7}]
    v_mul_f32 v{HU+4}, 0xbfb8aa3b, v{HU}
    v_mul_f32 v{HU+5}, 0xbfb8aa3b, v{HU+1}
    v_exp_f32 v{HU+4}, v{HU+4}
    v_exp_f32 v{HU+5}, v{HU+5}
    v_pk_mul_f32 v[{HU}:{HU+1}], v[{HU}:{HU+1}], v[{HU+2}:{HU+3}]
    v_add_f32 v{HU+4}, 1.0, v{HU+4}
    v_add_f32 v{HU+5}, 1.0, v{HU+5}
    v_rcp_f32 v{HU+4}, v{HU+4}
    v_rcp_f32 v{HU+5}, v{HU+5}
    v_pk_mul_f32 v[{HU}:{HU+1}], v[{HU}:{HU+1}], v[{HU+4}:{HU+5}]
    v_cvt_pk_bf16_f32 v10, v{HU}, v{HU+1}
    ds_write_b32 v22, v10
    """)
    signal(F_H)
    a("L_M2:")
    perm2(0); perm2(1)
    ex = '\n'.join(f"ds_read_b128 v[{XO+4*s}:{XO+4*s+3}], v23 offset:{64*s}" for s in range(2))
    lwait(F_H, 4, 10, extra=ex, sleep=0)
    for s in range(2):
        for e in (3, 0, 1, 2):
            c = '0' if s == 0 else f"v[{FB+4*e}:{FB+4*e+3}]"
            a(f"v_mfma_f32_16x16x32_bf16 v[{FB+4*e}:{FB+4*e+3}], v[{BC+16*s+4*e}:{BC+16*s+4*e+3}], v[{XO+4*s}:{XO+4*s+3}], {c}")
    a("s_mov_b64 exec, s[42:43]")
    for e in range(3):
        for i in range(4): a(f"v_perm_b32 v{FP+4*i+e}, v{FB+4*e+i}, v{FB+12+i}, s{18+e}")
    for i in range(4):
        a(f"buffer_store_dwordx4 v[{FP+4*i}:{FP+4*i+3}], v19, s[8:11], s61 offen sc1")
        if i < 3: a(f"s_add_u32 s61, s61, {H3S}")
    stamp(5)
    a("L_MEND:")
    finish()

    a(f"""
    L_R:
    s_mov_b32 s38, s3
    s_mov_b32 s48, 0xffff0000
    v_lshrrev_b32 v11, 4, v1
    """)
    topk_prep()
    a(f"""
    s_lshl_b32 s41, s38, 3
    v_lshl_add_u32 v50, v11, 1, s41
    v_lshlrev_b32 v51, 2, v1
    v_lshlrev_b32 v52, 3, v1
    s_lshl_b32 s43, s39, 6
    s_add_u32 s44, s43, {WS_GT}
    s_add_u32 s43, s43, {WS_RT}
    s_waitcnt vmcnt(0)
    """)
    stamp(1)
    DA = 120
    for k in range(8):
        for q in range(8):
            a(f"v_dot2_f32_bf16 v{DA+q}, v{RW+8*(q&3)+k}, v{104+8*(q>>2)+k}, {'0' if k == 0 else 'v%d' % (DA+q)}")
    a(f"v_add_u32 v49, {TAGC}, v49")
    for x, y in ((0, 2), (1, 3), (4, 6), (5, 7)): a(f"v_permlane32_swap_b32 v{DA+x}, v{DA+y}")
    for x, y in ((0, 2), (1, 3), (4, 6), (5, 7)): a(f"v_add_f32 v{DA+x}, v{DA+x}, v{DA+y}")
    a(f"v_mov_b32 v55, v49\nv_permlane16_swap_b32 v{DA}, v{DA+1}\nv_permlane16_swap_b32 v{DA+4}, v{DA+5}\nv_add_f32 v{DA}, v{DA}, v{DA+1}\nv_add_f32 v{DA+4}, v{DA+4}, v{DA+5}")
    for ctl in RED[:4]:
        for q in (4, 0): a(f"v_add_f32_dpp v{DA+q}, v{DA+q}, v{DA+q} {ctl} bank_mask:0xf")
    a(f"""
    v_cvt_pk_bf16_f32 v53, v{DA}, v{DA+4}
    v_and_b32 v{DA+4}, s48, v53
    v_mul_f32 v{DA+4}, 0xbfb8aa3b, v{DA+4}
    v_exp_f32 v{DA+4}, v{DA+4}
    v_bfe_i32 v{DA}, v53, 15, 1
    v_add_f32 v{DA+4}, 1.0, v{DA+4}
    v_rcp_f32 v{DA+4}, v{DA+4}
    v_or_b32 v{DA}, 0x8000, v{DA}
    v_xor_b32 v53, v53, v{DA}
    v_cvt_pk_bf16_f32 v{DA+4}, v{DA+4}, v{DA+4}
    ds_write_b16 v50, v53 offset:{L_RK}
    v_and_b32 v{DA+4}, 0x7fff, v{DA+4}
    ds_write_b32 v{vZ}, v49 offset:{L_TAG}
    ds_write_b16 v50, v{DA+4} offset:{L_GK}
    s_mov_b64 exec, 1
    ds_add_rtn_u32 v53, v{vZ}, v{vOne} offset:{F_PUB}
    s_mov_b64 exec, 0xff
    ds_read_b32 v48, v51 offset:{L_RK}
    ds_read_b32 v54, v51 offset:{L_GK}
    s_waitcnt lgkmcnt(0)
    v_readfirstlane_b32 s41, v53
    s_cmp_lg_u32 s41, 3
    s_cbranch_scc1 L_NP
    buffer_store_dwordx2 v[48:49], v52, s[8:11], s43 offen sc1
    buffer_store_dwordx2 v[54:55], v52, s[8:11], s44 offen sc1
    s_mov_b64 exec, 1
    ds_add_u32 v{vZ}, v{vOne} offset:{F_PUB}
    s_cmp_lg_u32 s39, 0
    s_cbranch_scc1 L_NP
    v_mov_b32 v56, 1
    v_mov_b32 v57, v49
    global_store_dwordx2 v{vZ}, v[56:57], s[14:15] sc1
    L_NP:
    s_mov_b64 exec, -1
    """)
    stamp(3)
    a("s_cmp_ge_u32 s39, 126\ns_cbranch_scc1 L_REND")
    if o['rdelay']: a(f"s_sleep {o['rdelay']}")
    gpoll(rt_loads, [(r, 'v49') for r in (13, 15, 17, 19)], 28, 4, mid=topk_keys, between=lambda: signal(F_POLL))
    stamp(4)
    if o['stamps']: a("s_mov_b32 s92, s62")
    topk('R')
    stamp(5)
    a(f"""
    s_or_b32 s41, s39, s38
    s_cmp_lg_u32 s41, 0
    s_cbranch_scc1 L_REND
    s_mov_b64 exec, 1
    buffer_store_dword v49, off, s[8:11], 0 sc1
    L_REND:
    """)
    finish()

    a(f"""
    L_S:
    s_mul_i32 s43, s3, {SCR_S}
    s_add_u32 s43, s43, {L_SCR}
    s_mul_i32 s44, s3, {UT_W}
    s_add_u32 s44, s44, {L_UT}
    s_mul_i32 s45, s3, {KA_S}
    s_add_u32 s45, s45, {L_KA}
    s_add_u32 s46, s43, {TAB_O}
    s_mov_b32 m0, s43
    s_mov_b32 s48, 0xffff0000
    """)
    if o['sprio'][0] != o['sprio'][1]:
        a(f"s_setprio {o['sprio'][0]}\ns_cmp_lt_u32 s3, 4\ns_cbranch_scc1 L_SP\ns_setprio {o['sprio'][1]}\nL_SP:")
    elif o['sprio'][0]: a(f"s_setprio {o['sprio'][0]}")
    a(f"""
    v_mov_b32 v16, 0
    v_mov_b32 v17, 0
    v_mov_b32 v18, 0
    v_mov_b32 v19, 0
    v_lshl_add_u32 v14, v1, 3, s44
    v_lshl_add_u32 v15, v1, 4, s45
    s_mov_b32 exec_hi, 0x0fffffff
    ds_write_b64 v14, v[16:17]
    s_mov_b64 exec, -1
    """)
    for k in range(4): a(f"ds_write_b128 v15, v[16:19] offset:{1024*k}")
    a(f"""
    v_mov_b32 v29, 0x3f803f80
    ds_write_addtid_b32 v29
    ds_write_addtid_b32 v16 offset:256
    v_and_b32 v17, 15, v1                 ; j / n
    v_lshrrev_b32 v18, 4, v1              ; c / q
    v_mul_u32_u24 v19, {SCR_W}, v17
    v_lshl_add_u32 v19, v18, 4, v19
    v_add_u32 v19, s43, v19
    v_and_b32 v20, 31, v1
    v_lshrrev_b32 v21, 4, v20
    v_lshl_add_u32 v20, v21, 8, v20
    v_lshrrev_b32 v21, 5, v1
    v_mul_u32_u24 v21, {E0A - E1A}, v21
    v_lshl_add_u32 v20, v20, 2, v21
    v_add_u32 v20, s43, v20
    v_lshlrev_b32 v4, 5, v17
    v_lshl_add_u32 v4, v18, 4, v4
    v_add_u32 v4, s44, v4
    v_lshlrev_b32 v5, 4, v1
    v_add_u32 v5, {L_CB}, v5
    v_and_b32 v6, 3, v17
    v_mul_u32_u24 v6, 320, v6
    v_lshrrev_b32 v21, 2, v17
    v_sub_u32 v21, v18, v21
    v_lshl_add_u32 v6, v21, 4, v6
    v_add3_u32 v6, v6, 48, s45            ; K2/K3 base
    v_lshlrev_b32 v7, 5, v17
    v_lshl_add_u32 v7, v18, 3, v7
    v_add_u32 v7, s43, v7
    v_and_b32 v21, 1, v17
    v_mul_u32_u24 v21, {E0A - E1A}, v21
    v_lshrrev_b32 v22, 1, v17
    v_lshl_add_u32 v21, v22, 2, v21
    v_lshlrev_b32 v22, 4, v18
    v_sub_u32 v21, v22, v21
    s_add_u32 s41, s43, {E0A + 28}
    v_add_u32 v162, s41, v21
    v_mov_b32 v21, 0x3000
    v_lshlrev_b32 v21, v17, v21
    v_lshlrev_b32 v22, 3, v18
    v_lshrrev_b32 v21, v22, v21
    s_mov_b32 s41, 0x10001
    """)
    for q in range(4):
        a(f"v_bfe_u32 v22, v21, {2*q}, 2\nv_lshl_or_b32 v22, v22, 15, v22\nv_and_b32 v22, s41, v22\nv_mul_u32_u24 v{164+q}, 0xffff, v22")
    a(f"""
    v_lshlrev_b32 v25, 5, v17             ; tile0: (8n + 4(q&1) + 128(q>>1))*4
    v_and_b32 v26, 1, v18
    v_lshl_add_u32 v25, v26, 4, v25
    v_lshrrev_b32 v27, 1, v18
    v_lshl_add_u32 v25, v27, 9, v25
    v_add_u32 v25, s46, v25
    v_lshlrev_b32 v28, 4, v17
    v_lshl_add_u32 v28, v26, 8, v28
    v_add_u32 v28, {256*4}, v28
    v_lshlrev_b32 v29, 3, v17
    v_lshl_add_u32 v29, v26, 8, v29
    v_add_u32 v29, {384*4}, v29
    v_cmp_eq_u32 vcc, 1, v27
    v_mov_b32 v30, 8
    v_mov_b32 v31, 128
    v_cndmask_b32 v26, v28, v29, vcc
    v_cndmask_b32 v27, v30, v31, vcc
    v_add_u32 v26, s46, v26
    v_add_u32 v27, v26, v27
    v_lshlrev_b32 v28, 2, v17             ; tile2: (512 + n + 64q)*4 + 64*i
    v_lshl_add_u32 v28, v18, 8, v28
    v_add_u32 v28, s46, v28
    v_add_u32 v28, {512*4}, v28
    v_cmp_eq_u32 vcc, 0, v1
    s_waitcnt vmcnt(0)
    """)
    stamp(1); cstamp(8)
    A_, B_ = 32, 34
    W1, W2, W4, W8, W128 = 36, 40, 44, 48, 52
    BASE, CH0, T0, T1 = 56, 60, 64, 66
    BOP, AOP, KAC, PK = 68, 100, 132, 144
    a(f"""
    v_mul_f32 v12, {LOG2E}, v12
    v_lshlrev_b32 v32, 16, v8
    v_and_b32 v33, s48, v8
    v_exp_f32 v12, v12
    v_mul_f32 v32, {LOG2E}, v32
    v_mul_f32 v33, {LOG2E}, v33
    v_exp_f32 v32, v32
    v_exp_f32 v33, v33
    v_cvt_pk_bf16_f32 v12, v12, v12
    v_lshlrev_b32 v34, 16, v9
    v_and_b32 v35, s48, v9
    v_cvt_pk_bf16_f32 v8, v32, v33
    v_and_b32 v12, s48, v12               ; dt
    v_lshlrev_b32 v32, 16, v8
    v_and_b32 v33, s48, v8
    v_mul_f32 v34, v34, v12
    v_mul_f32 v35, v35, v12
    v_mul_f32 v32, v32, v12
    v_mul_f32 v33, v33, v12
    v_mul_f32 v34, 0.15915494, v34
    v_mul_f32 v35, 0.15915494, v35
    v_mul_f32 v32, 0xbfb8aa3b, v32
    v_mul_f32 v33, 0xbfb8aa3b, v33
    v_add_f32 v12, v12, v12               ; 2*dt
    v_cndmask_b32 v13, 0, v13, vcc
    v_lshlrev_b32 v{BASE}, 16, v10
    v_and_b32 v{BASE+1}, s48, v10
    v_lshlrev_b32 v{BASE+2}, 16, v11
    v_and_b32 v{BASE+3}, s48, v11
    v_mul_f32 v{BASE}, v{BASE}, v12
    v_mul_f32 v{BASE+1}, v{BASE+1}, v12
    v_mul_f32 v{BASE+2}, v{BASE+2}, v12
    v_mul_f32 v{BASE+3}, v{BASE+3}, v12
    """)
    def direct(W, k, conj):
        lit = {1: None, 8: '0x41000000', 128: '0x43000000'}[k]
        ta, tb = (T0, T1) if lit else (A_, B_)
        if lit:
            for m in range(2): a(f"v_mul_f32 v{T0+m}, {lit}, v{A_+m}\nv_mul_f32 v{T1+m}, {lit}, v{B_+m}")
        for m in range(2): a(f"v_rndne_f32 v{W+m}, v{tb+m}\nv_exp_f32 v{T0+m}, v{ta+m}")
        for m in range(2):
            if conj: a(f"v_sub_f32 v{T1+m}, v{W+m}, v{tb+m}")
            else: a(f"v_sub_f32 v{T1+m}, v{tb+m}, v{W+m}")
        for m in range(2): a(f"v_cos_f32 v{W+m}, v{T1+m}\nv_sin_f32 v{W+2+m}, v{T1+m}")
        a(f"v_pk_mul_f32 v[{W}:{W+1}], v[{W}:{W+1}], v[{T0}:{T0+1}]\nv_pk_mul_f32 v[{W+2}:{W+3}], v[{W+2}:{W+3}], v[{T0}:{T0+1}]")
    def cmul(D, X, W):
        a(f"""
        v_pk_mul_f32 v[{T0}:{T0+1}], v[{X+2}:{X+3}], v[{W+2}:{W+3}]
        v_pk_mul_f32 v[{T1}:{T1+1}], v[{X+2}:{X+3}], v[{W}:{W+1}]
        v_pk_fma_f32 v[{D+2}:{D+3}], v[{X}:{X+1}], v[{W+2}:{W+3}], v[{T1}:{T1+1}]
        v_pk_fma_f32 v[{D}:{D+1}], v[{X}:{X+1}], v[{W}:{W+1}], v[{T0}:{T0+1}] neg_lo:[0,0,1] neg_hi:[0,0,1]
        """)
    batch = []
    def emit(X, row):
        p = PK + 2 * len(batch)
        a(f"v_cvt_pk_bf16_f32 v{p+1}, v{X+2}, v{X+3}\nv_cvt_pk_bf16_f32 v{p}, v{X}, v{X+1}")
        batch.append((p, row))
    def tile_mfma(t, nwait):
        a(f"s_waitcnt lgkmcnt({nwait})\n.p2align 3")
        for ks in range(8):
            c = '0' if ks == 0 else f"v[{KAC+4*t}:{KAC+4*t+3}]"
            a(f"v_mfma_f32_16x16x32_bf16 v[{KAC+4*t}:{KAC+4*t+3}], v[{AOP+4*ks}:{AOP+4*ks+3}], v[{BOP+4*ks}:{BOP+4*ks+3}], {c}")
    def flush():
        for p, row in batch:
            a(f"ds_write_addtid_b32 v{p} offset:{row*SCR_W}\nds_write_addtid_b32 v{p+1} offset:{row*SCR_W+256}")
        batch.clear()
    def reads(R):
        flush()
        for ks in range(8): a(f"ds_read_b128 v[{R+4*ks}:{R+4*ks+3}], v19 offset:{64*ks}")
    direct(W8, 8, True)
    a(".p2align 3")
    emit(W8, 1)
    cmul(CH0, W8, W8); emit(CH0, 2)
    for b in range(3, 16):
        cmul(CH0, CH0, W8); emit(CH0, b)
        if b == 7: flush()
    reads(BOP)
    stamp(3)
    direct(W1, 1, False)
    direct(W128, 128, False)
    a(".p2align 3")
    cmul(W2, W1, W1); cmul(W4, W2, W2)
    for j in range(2):
        if j: cmul(BASE, BASE, W128)
        emit(BASE, 8 * j)
        for i in range(1, 8):
            cmul(CH0, BASE if i == 1 else CH0, W1); emit(CH0, 8 * j + i)
        flush()
    reads(AOP)
    row = 0
    for j in range(2):
        cmul(BASE, BASE, W128); emit(BASE, row); row += 1
        for i in range(1, 4):
            cmul(CH0, BASE if i == 1 else CH0, W2); emit(CH0, row); row += 1
    def mfma_with_writes(t):
        a("s_waitcnt lgkmcnt(0)\n.p2align 3")
        wr = [x for p, row in batch for x in (f"ds_write_addtid_b32 v{p} offset:{row*SCR_W}", f"ds_write_addtid_b32 v{p+1} offset:{row*SCR_W+256}")]
        batch.clear()
        for ks in range(8):
            c = '0' if ks == 0 else f"v[{KAC+4*t}:{KAC+4*t+3}]"
            a(f"v_mfma_f32_16x16x32_bf16 v[{KAC+4*t}:{KAC+4*t+3}], v[{AOP+4*ks}:{AOP+4*ks+3}], v[{BOP+4*ks}:{BOP+4*ks+3}], {c}")
            a(wr.pop(0)); a(wr.pop(0))
        while wr: a(wr.pop(0))
    mfma_with_writes(0)
    for j in range(4):
        cmul(BASE, BASE, W128); emit(BASE, row); row += 1
        cmul(CH0, BASE, W4); emit(CH0, row); row += 1
    reads(AOP)
    for j in range(9):
        cmul(BASE, BASE, W128); emit(BASE, j)
    mfma_with_writes(1)
    reads(AOP)
    if o['kbar']: signal(F_UT)
    a(f"""
    v_add_f32 v{KAC}, v{KAC}, v13
    v_lshl_add_u32 v30, v1, 3, s46
    v_lshl_add_u32 v31, v1, 4, s46
    v_sub_u32 v32, 63, v1
    v_lshl_add_u32 v35, v32, 3, s43       ; arrays + 8*(63-i)
    s_add_u32 s41, s45, {K3A + 240 - 252}
    v_lshl_add_u32 v34, v32, 2, s41
    v_lshrrev_b32 v32, 1, v32
    v_and_b32 v33, 1, v1
    v_mul_u32_u24 v33, 1280, v33
    v_lshl_add_u32 v33, v32, 2, v33
    s_add_u32 s41, s45, {K2X + 52}
    v_add_u32 v33, s41, v33
    v_mov_b32 v36, s46
    ds_write_b128 v25, v[{KAC}:{KAC+3}]
    ds_write_b64 v26, v[{KAC+4}:{KAC+5}]
    ds_write_b64 v27, v[{KAC+6}:{KAC+7}]
    ds_read_b128 v[40:43], v31
    ds_read_b32 v47, v31 offset:16
    ds_read_b64 v[44:45], v30 offset:{256*4}
    ds_read_b32 v46, v30 offset:{258*4}
    ds_write_b32 v20, v16
    """)
    tile_mfma(2, 8 + (1 if o['kbar'] else 0))
    stamp(4)
    a(f"""
    s_waitcnt lgkmcnt(0)
    v_cvt_pk_bf16_f32 v56, v43, v42
    v_cvt_pk_bf16_f32 v57, v41, v40
    v_cvt_pk_bf16_f32 v58, v47, v43
    v_cvt_pk_bf16_f32 v59, v42, v41
    v_cvt_pk_bf16_f32 v60, v46, v45
    v_cvt_pk_bf16_f32 v61, v44, v44
    v_cvt_pk_bf16_f32 v62, v46, v46
    v_cvt_pk_bf16_f32 v63, v45, v44
    v_cvt_pk_bf16_f32 v64, 0, v46
    v_cvt_pk_bf16_f32 v65, v40, 0
    v_add_u32 v163, 512, v162
    ds_write2_b32 v28, v{KAC+8}, v{KAC+9} offset0:0 offset1:16
    ds_write2_b32 v28, v{KAC+10}, v{KAC+11} offset0:32 offset1:48
    ds_read_b32 v48, v30 offset:{385*4}
    ds_read_b32 v49, v30 offset:{386*4}
    ds_read_b32 v50, v30 offset:{513*4}
    ds_read_b32 v51, v30 offset:{514*4}
    ds_read_b32 v52, v36 offset:{512*4}
    ds_write_b64 v35, v[56:57] offset:{E1A + 576}
    ds_write_b64 v35, v[58:59] offset:{E0A + 572}
    ds_write_b64 v35, v[60:61] offset:{E1A + 64}
    ds_write_b64 v35, v[62:63] offset:{E0A + 60}
    s_mov_b64 exec, 1
    ds_write_b32 v35, v65 offset:{E0A + 1084 - 504}
    s_mov_b32 exec_lo, 0
    s_brev_b32 exec_hi, 1
    ds_write_b32 v35, v64 offset:{E1A + 56}
    ds_write_b32 v35, v62 offset:{E1A + 60}
    ds_write_b32 v35, v62 offset:{E0A + 56}
    s_mov_b64 exec, -1
    s_waitcnt lgkmcnt(8)
    v_cvt_pk_bf16_f32 v80, v48, v49
    v_cvt_pk_bf16_f32 v81, v50, v51
    v_cvt_pk_bf16_f32 v82, v52, v52
    ds_write2_b32 v33, v80, v80 offset0:0 offset1:81
    ds_write2_b32 v33, v80, v80 offset0:162 offset1:243
    ds_write2_b32 v34, v81, v81 offset0:0 offset1:81
    ds_write2_b32 v34, v81, v81 offset0:162 offset1:243
    """)
    AF, A33, AFIX = 8, 72, 76
    for q in range(4): a(f"v_and_b32 v{AFIX+q}, v82, v{164+q}")
    for k in range(17):
        de = 2 * k + 1; off = 264 - 8 * de; r = AF + 4 * k
        v, off = (163, off - 128) if off >= 128 else (162, off)
        a(f"ds_read2_b32 v[{r}:{r+1}], v{v} offset0:{off} offset1:{off+1}\nds_read2_b32 v[{r+2}:{r+3}], v{v} offset0:{off+2} offset1:{off+3}")
    stamp(2); cstamp(9)
    lwait(F_UT, 12 if o['kbar'] else 4, 84, sleep=1)
    if o['cprio'][0] != o['cprio'][1]:
        a(f"s_setprio {o['cprio'][0]}\ns_cmp_lt_u32 s3, 4\ns_cbranch_scc1 L_CP\ns_setprio {o['cprio'][1]}\nL_CP:")
    else: a(f"s_setprio {o['cprio'][0]}")
    stamp(5); cstamp(10)
    info = conv2_stream(a, 4, 5, 6, 7, vZ, vOne, sig, UT_PAD, AF, A33, AFIX, 80, 22, K2X, K2Y, K3A, 0, lead=o['lead'], look=o['look'], epilag=o['epilag'])
    if kw.get('verbose'): print(info, LDS_BYTES)
    stamp(6); cstamp(11)
    if o['stamps']:
        a("s_sub_u32 s82, s82, s80\ns_sub_u32 s86, s86, s84\nL_FIN:\ns_mov_b64 exec, -1\ns_waitcnt vmcnt(0) lgkmcnt(0)")
        stamp(15)
        for i in range(16): a(f"v_writelane_b32 v4, s{64+2*i}, {i}")
        a(f"""
        s_mul_i32 s40, s2, 12
        s_add_u32 s40, s40, s3
        s_lshl_b32 s40, s40, 6
        s_add_u32 s40, s40, {WS_ST}
        v_lshlrev_b32 v5, 2, v1
        s_mov_b64 exec, 0xffff
        buffer_store_dword v4, v5, s[8:11], s40 offen
        """)
    a("L_END:\ns_endpgm")
    lines = hazard.fix(a.l, verbose=kw.get('verbose', False))
    k = kernel_text(KNAME, '\n'.join(lines) + '\n', 168, sgpr=102)
    return file_text([f'@launch grid=(256,1,1) block=(768,1,1) lds={LDS_BYTES}'], [k])

if __name__ == '__main__':
    out = sys.argv[1]
    kw = {}
    for x in sys.argv[2:]:
        k, v = x.split('=', 1); kw[k] = eval(v)
    open(out, 'w').write(gen(**kw))
```

```python
def conv3_stream(a, vB, vU, vG, vW, vZ, vOne, sig, UT_PAD, AF, A33, AFIX, RK2, RK3, RC, SL0, NS, smask,
                 maxout=13, lead=6, look=14, epilag=4, reserve=2, lazy_res=None, gate=None):
    R = lambda r: ('R', r)
    mf = []; started = set()
    def M(dst, A, B):
        mf.append((dst, A, B, dst not in started)); started.add(dst)
    packs = []; tile_end = {}
    for t in range(8):
        if t >= 2:
            s = t - 2
            for q in range(4):
                M(('T', 2, s, q), ('U', s, 8 if q == 3 else 0, t), R(RC + 4 * (0, 1, 2, 1)[q]))
                if q & 1: packs.append((len(mf) - 1, ('P2', s, q >> 1), (('T', 2, s, q - 1), ('T', 2, s, q))))
            M(('acc', t), R(A33), ('U', s, 0, t))
        if t >= 4:
            s = t - 4
            for q in range(2): M(('T', 3, s, q), ('U', s, 8 * q, t), R(RC + 4 * (3 + q)))
            packs.append((len(mf) - 1, ('P3', s), (('T', 3, s, 0), ('T', 3, s, 1))))
            M(('acc', t), R(AFIX), ('U', s, 0, t))
        for be in range(8):
            M(('acc', t), R(AF + 4 * be), ('B', t, be))
            if t < 7: M(('acc', t + 1), R(AF + 32 + 4 * be), ('B', t, be))
        for al in (4, 3, 2):
            if t - al >= 0:
                for h in range(2): M(('acc', t), ('P2', t - al, h), R(RK2 + 8 * (al - 2) + 4 * h))
        for al in range(7, 3, -1):
            if t - al >= 0: M(('acc', t), ('P3', t - al), R(RK3 + 4 * (al - 4)))
        tile_end[t] = max(i for i, m in enumerate(mf) if m[0] == ('acc', t))
    tile_first = {t: min(i for i, m in enumerate(mf) if m[0] == ('acc', t)) for t in range(8)}
    last = {}; firstuse = {}
    for i, m in enumerate(mf):
        for k in (m[1], m[2]):
            if k[0] == 'R': continue
            firstuse.setdefault(k, i); last[k] = i
    late = gate[0] if gate else None
    for t in range(8):
        firstuse[('X', t)] = max(0, tile_first[t] - 4) if t != late else tile_end[t] - 10
        firstuse[('G', t)] = min(len(mf) - 1, tile_end[t] + 1)
    lazy_res = lazy_res or {}
    for n_, r in enumerate(sorted(lazy_res, key=lambda r: min(i for i, m in enumerate(mf) if ('R', r) in (m[1], m[2])))):
        fu = min(i for i, m in enumerate(mf) if ('R', r) in (m[1], m[2]))
        firstuse[('R', r)] = min(fu, look + 3 + 2 * n_) if False else fu
    order = sorted([k for k in firstuse if k[0] in 'UBXGR'], key=lambda k: (firstuse[k], k[0] != 'X'))
    gated = lambda k: gate is not None and k[0] in 'UBXG' and k[1] >= gate[0]
    gate_at = min([firstuse[k] for k in order if gated(k)] + [10 ** 6]) - lead - 1
    gstate = [0]
    free = list(range(NS)); slot = {}; done_at = {}; minfree = [NS]
    def alloc(k):
        assert free, f'out of slots at {k}'
        slot[k] = free.pop(0); minfree[0] = min(minfree[0], len(free))
    reg = lambda k: k[1] if k[0] == 'R' else SL0 + 4 * slot[k]
    nds = [0]; waited = [0]
    def wait_for(keys):
        need = max([done_at[k] for k in keys if k in done_at] + [0])
        if need > waited[0]:
            assert nds[0] - need <= 15
            a(f"s_waitcnt lgkmcnt({nds[0] - need})"); waited[0] = need
    pend = []
    def load(k, i):
        if k[0] == 'R':
            for txt in lazy_res[k[1]]: a(txt); nds[0] += 1
            done_at[k] = nds[0]; return
        alloc(k); r = reg(k)
        if k[0] == 'B': a(f"ds_read_b128 v[{r}:{r+3}], v{vB} offset:{UT_PAD + 512 * k[1] - 32 * (2 * k[2] + 1)}")
        elif k[0] == 'U': a(f"ds_read_b128 v[{r}:{r+3}], v{vB} offset:{UT_PAD + 512 * k[1] - 32 - 2 * k[2]}")
        elif k[0] == 'G': a(f"ds_read_b128 v[{r}:{r+3}], v{vG} offset:{1024 * k[1]}")
        else: a(f"ds_read_b64 v[{r+2}:{r+3}], v{vU} offset:{512 * k[1]}")
        nds[0] += 1; done_at[k] = nds[0]
        if k[0] == 'X':
            for q in range(4):
                def f(q=q, k=k):
                    wait_for([k]); r = reg(k); src = r + 2 + (q >> 1)
                    a(f"v_and_b32 v{r+q}, {smask}, v{src}" if q & 1 else f"v_lshlrev_b32 v{r+q}, 16, v{src}")
                pend.append([i + 6, f, 0, k])
    def add_pack(i, P, T):
        for q in range(4):
            def f(q=q):
                if q == 0: alloc(P)
                a(f"v_cvt_pk_bf16_f32 v{reg(P)+q}, v{reg(T[0])+q}, v{reg(T[1])+q}")
                if q == 3:
                    for x in T: free.append(slot.pop(x))
            pend.append([i + epilag + 1, f, 0, P])
    def add_tile(i, t):
        k = ('acc', t); X = ('X', t); G = ('G', t)
        if t == late:
            for q in range(4):
                def f0(q=q): a(f"v_add_f32 v{reg(k)+q}, v{reg(k)+q}, v{reg(X)+q}")
                pend.append([i + epilag + 1, f0, 0, None])
        for q in range(4):
            def f(q=q):
                wait_for([G])
                a(f"v_fma_f32 v{reg(k)+q}, -v{reg(G)+q}, v{reg(k)+q}, v{reg(X)+q}")
                if q == 3: free.append(slot.pop(X)); free.append(slot.pop(G))
            pend.append([i + epilag + 1, f, 0, None])
        def f1(): r = reg(k); a(f"v_cvt_pk_bf16_f32 v{r}, v{r}, v{r+1}")
        def f2(): r = reg(k); a(f"v_cvt_pk_bf16_f32 v{r+1}, v{r+2}, v{r+3}")
        def f3():
            r = reg(k); a(f"ds_write_b64 v{vW}, v[{r}:{r+1}] offset:{512*t}"); nds[0] += 1
            if t in sig:
                a(f"ds_write_b32 v{vZ}, v{vOne} offset:{sig[t]}"); nds[0] += 1
            free.append(slot.pop(k))
        pend.extend([[i + epilag + 1, f1, 0, None], [i + epilag + 1, f2, 0, None], [i + epilag + 2, f3, 1, None]])
    pk = {i: (P, T) for i, P, T in packs}
    te = {i: t for t, i in tile_end.items()}
    qi = 0; stats = dict(two_ds=0, mixed=0, forced=0)
    a(".p2align 3")
    for i, m in enumerate(mf):
        n = 0; nv = 0
        needs = [m[1], m[2]] + ([('X', m[0][1])] if (m[3] and m[0][0] == 'acc' and m[0][1] != late) else [])
        if gate:
            if i == gate_at - 7:
                a(f"ds_read_b32 v{gate[4]}, v{gate[3]} offset:{gate[1]}"); nds[0] += 1; done_at['gate'] = nds[0]; n += 1
            elif i == gate_at - 2:
                wait_for(['gate']); a(f"v_cmp_le_u32 vcc, {gate[2]}, v{gate[4]}"); nv += 1
            elif i == gate_at:
                a(f"""
                s_cbranch_vccnz L_GATE_OK
                s_mov_b32 s62, 0
                L_GATE:
                ds_read_b32 v{gate[4]}, v{gate[3]} offset:{gate[1]}
                s_add_u32 s62, s62, 1
                s_waitcnt lgkmcnt(0)
                v_cmp_le_u32 vcc, {gate[2]}, v{gate[4]}
                s_cbranch_vccnz L_GATE_OK
                s_sleep 1
                s_cmp_lt_u32 s62, {gate[5]}
                s_cbranch_scc1 L_GATE
                L_GATE_OK:
                """); gstate[0] = 1
        def try_loads(urgent_only):
            nonlocal qi, n
            while qi < len(order):
                k = order[qi]
                if gated(k) and not gstate[0]: break
                must = firstuse[k] <= i
                room = nds[0] - waited[0] <= maxout and len(free) > reserve
                urgent = room and ((n == 0 and firstuse[k] <= i + lead) or (i == 0 and firstuse[k] <= lead))
                lazy = room and n == 0 and nv == 0 and firstuse[k] <= i + look
                if not (must or urgent or (lazy and not urgent_only)): break
                load(k, i); qi += 1; n += 1
        try_loads(True)
        forced = [p for p in pend if p[3] is not None and p[3] in needs]
        for p in forced:
            pend.remove(p); p[1](); nv += 1; stats['forced'] += 1
        if n == 0:
            ready = [p for p in pend if p[0] <= i]
            while ready and nv < 2:
                p = ready.pop(0)
                if p[2] and nv: break
                pend.remove(p); p[1]()
                if p[2]: n += 1; break
                nv += 1
        try_loads(False)
        stats['two_ds'] += max(0, n - 1); stats['mixed'] += int(n > 0 and nv > 0)
        wait_for([m[1], m[2]])
        c = None
        if m[3]:
            alloc(m[0])
            c = f"v[{reg(needs[2])}:{reg(needs[2])+3}]" if len(needs) == 3 else '0'
        d = reg(m[0]); ra = reg(m[1]); rb = reg(m[2])
        c = c or f"v[{d}:{d+3}]"
        a(f"v_mfma_f32_16x16x32_bf16 v[{d}:{d+3}], v[{ra}:{ra+3}], v[{rb}:{rb+3}], {c}")
        for k in (m[1], m[2]):
            if k[0] != 'R' and last[k] == i and k in slot: free.append(slot.pop(k))
        if i in pk: add_pack(i, *pk[i])
        if i in te: add_tile(i, te[i])
    left = len(pend)
    for p in list(pend): p[1]()
    return dict(n=len(mf), minfree=minfree[0], nds=nds[0], left=left, gate_at=gate_at, **stats)

if __name__ == '__main__':
    from asmlib import A
    import hazard
    for lead, look in ((6, 14), (5, 12), (4, 20), (8, 24)):
        a = A()
        print(lead, look, conv3_stream(a, 4, 5, 6, 7, 3, 2, {t: 384 + 4 * t for t in range(8)}, 480, 12, 76, 80, 84, 108, 124, 144, 28, 's48', lead=lead, look=look))
        l = hazard.fix(a.l)
        print(len(l), sum('s_waitcnt' in x for x in l), sum('s_nop' in x for x in l))
```

```python
import sys
from asmlib import *
import hazard
from conv3 import conv3_stream

WS_RT, WS_GT, WS_SEL, WS_H2, WS_H3, WS_KX, WS_ST = 0x1000, 0x3000, 0x5000, 0x10000, 0x100000, 0x340000, 0xF00000
H3S = 8192 + 128
F_PUB, F_COL, F_UT, F_H2P, F_TK, F_GX, F_P, F_H, L_TAG, F_KA, F_W2, F_UT2, F_COL2, F_RI = 0, 4, 8, 12, 16, 20, 24, 28, 32, 36, 40, 44, 48, 52
L_GM, L_LIST, L_SEL, L_DUM, L_RK, L_GK, F_T, L_MK = 64, 128, 256, 300, 320, 352, 384, 640
L_SCR = 1024; SCR_S = 8768; SCR_W = 544
TAB_O = 5184
E1A, E0A = 0, 1220
L_KA = L_SCR + 8 * SCR_S; KA_S = 4096
K2X, K2Y, K3A = 0, 1280, 2560
L_UT = L_KA + 8 * KA_S; UT_W = 4672; UT_PAD = 480
L_G = L_UT + 8 * UT_W
L_CB = L_G + 8192
LDS_BYTES = L_CB + 5 * 1024
L_XS = L_SCR + 4 * SCR_S
L_P = L_XS + 4 * 4096; P_T = 272; P_W = 8 * P_T
L_HS = L_P + 4 * P_W; HS_W = 160
L_W2 = L_KA; W2_R = 1056; W2_G = 8 * W2_R + 128
TAGC = 0x9E3779B9
LOG2E = 0x3FB8AA3B
SPIN = 1 << 15
OOB = 0x1000000

DEF = dict(stamps=False, rownt='', wnt='nt', nD=6, rdelay=0, h2delay=8, h3sleep=4, h3at=6, esleep=2, kdelay=0, wdelay=0,
           aprio=1, bprio=2, pprio=0, oprio=2, nearly=0, two=True, th=10, nA=6, pubw=True, vfirst=1, mdelay=0, lazy=True, h3pre=False, lead=6, look=14, epilag=4, slowc=3, groups=((0, 1), (2, 3), (4,), (5,), (6,), (7,)))

def gen(**kw):
    o = dict(DEF); o.update(kw)
    a = A()
    vZ, vOne = 3, 2
    groups = o['groups']
    sig = {g[-1]: F_T + 32 * g[-1] for g in groups}
    RED = ('quad_perm:[1,0,3,2] row_mask:0xf', 'quad_perm:[2,3,0,1] row_mask:0xf', 'row_half_mirror row_mask:0xf', 'row_mirror row_mask:0xf',
           'row_bcast:15 row_mask:0xa', 'row_bcast:31 row_mask:0xc')
    def stamp(i):
        if o['stamps']: a(f"s_memrealtime s[{64+2*i}:{65+2*i}]\ns_waitcnt lgkmcnt(0)")
    def cstamp(i):
        if o['stamps']: a(f"s_memtime s[{64+2*i}:{65+2*i}]\ns_waitcnt lgkmcnt(0)")
    def finish():
        a("s_branch L_FIN" if o['stamps'] else "s_endpgm")
    def signal(f):
        a(f"s_mov_b64 exec, 1\nds_add_u32 v{vZ}, v{vOne} offset:{f}\ns_mov_b64 exec, -1")
    def lwait(f, n, vt, extra='', sleep=1, sc='s62'):
        L = a.lab('W'); D = a.lab('WD')
        a(f"""
        s_mov_b32 {sc}, 0
        {L}:
        ds_read_b32 v{vt}, v{vZ} offset:{f}
        {extra}
        s_add_u32 {sc}, {sc}, 1
        s_waitcnt lgkmcnt(0)
        v_cmp_le_u32 vcc, {n}, v{vt}
        s_cbranch_vccnz {D}
        """)
        if sleep: a(f"s_sleep {sleep}")
        a(f"s_cmp_lt_u32 {sc}, {SPIN * 64}\ns_cbranch_scc1 {L}\n{D}:")
    def selwait(vd, va, sleep, extra='', vd2=None):
        L = a.lab('SW'); D = a.lab('SD')
        a(f"s_mov_b32 s62, 0\n{L}:\nds_read_b32 v{vd}, v{va} offset:{L_SEL}")
        if vd2: a(f"ds_read_b32 v{vd2}, v{va} offset:{L_SEL + 16}")
        a(f"s_add_u32 s62, s62, 1\ns_waitcnt lgkmcnt(0)")
        if vd2: a(f"v_min_u32 v10, v{vd}, v{vd2}\nv_cmp_eq_u32 vcc, 0, v10")
        else: a(f"v_cmp_eq_u32 vcc, 0, v{vd}")
        a(f"{extra}\ns_cbranch_vccz {D}\n{'s_sleep %d' % sleep if sleep else ''}\ns_cmp_lt_u32 s62, {SPIN * 64}\ns_cbranch_scc1 {L}\n{D}:")
    def gpoll(loads, tags, vt, sleep, cnt='s62', mid='', between=None, nb=0, skipfirst=False):
        L = a.lab('P'); D = a.lab('PD'); C = a.lab('PC')
        a(f"s_mov_b32 {cnt}, 0")
        if between is not None:
            if not skipfirst: a(loads)
            between(); a(f"s_waitcnt vmcnt({nb})\ns_branch {C}")
        a(f"{L}:\n{loads}\ns_waitcnt vmcnt(0)\n{C}:\ns_add_u32 {cnt}, {cnt}, 1")
        a(f"v_xor_b32 v{vt}, {tags[0][1]}, v{tags[0][0]}")
        for t, e in tags[1:]: a(f"v_bitop3_b32 v{vt}, v{t}, {e}, v{vt} bitop3:0xbe")
        a(f"v_cmp_ne_u32 vcc, 0, v{vt}\n{mid}\ns_cbranch_vccz {D}")
        if sleep: a(f"s_sleep {sleep}")
        a(f"s_cmp_lt_u32 {cnt}, {SPIN}\ns_cbranch_scc1 {L}\n{D}:")
    K = list(range(96, 104))
    def topk_prep():
        a(f"""
        s_lshl_b32 s41, s38, 11
        v_add_u32 v135, s41, v8
        v_lshrrev_b32 v136, 2, v135
        v_or_b32 v136, 0x8000, v136
        """)
        for j in range(1, 8): a(f"v_add_u32 v{136+j}, {(j & 3) + 256 * (j >> 2)}, v136")
        a(f"""
        s_lshl_b32 s41, s38, 4
        v_lshl_add_u32 v116, v12, 2, s41
        v_and_b32 v117, 15, v1
        v_lshlrev_b32 v117, 2, v117
        v_lshlrev_b32 v118, 4, v12
        s_lshl_b32 s26, s38, 5
        s_add_u32 s27, s26, 28
        v_and_b32 v119, 7, v1
        v_lshl_add_u32 v119, v119, 2, s26
        v_lshrrev_b32 v120, 3, v1
        v_lshlrev_b32 v120, 4, v120
        v_mov_b32 v121, {L_DUM - L_LIST}
        v_mov_b32 v122, {L_DUM - L_SEL}
        s_mov_b32 s25, {WS_RT}
        """)
    topk_keys = ''.join(f"v_lshl_or_b32 v{K[2*j]}, v{88+2*j}, 16, v{136+2*j}\nv_and_or_b32 v{K[2*j+1]}, v{88+2*j}, s21, v{137+2*j}\n" for j in range(4))
    rt_loads = "buffer_load_dwordx4 v[88:91], v135, s[8:11], s25 offen sc1\nbuffer_load_dwordx4 v[92:95], v135, s[8:11], s25 offen offset:1024 sc1\n"
    def topk(X):
        t3 = [f"v_max3_u32 v108, v{K[0]}, v{K[1]}, v{K[2]}", f"v_med3_u32 v109, v{K[0]}, v{K[1]}, v{K[2]}", f"v_min3_u32 v110, v{K[0]}, v{K[1]}, v{K[2]}"]
        for j in range(3, 8):
            t3 += [f"v_med3_u32 v110, v109, v110, v{K[j]}", f"v_med3_u32 v109, v108, v109, v{K[j]}", f"v_max_u32 v108, v108, v{K[j]}"]
        a(t3.pop(0))
        a(f"v_max3_u32 v107, v{K[3]}, v{K[4]}, v{K[5]}\nv_max3_u32 v106, v108, v{K[6]}, v{K[7]}\nv_max_u32 v106, v106, v107")
        for ctl in RED[:4]:
            a(t3.pop(0)); a(t3.pop(0))
            a(f"v_max_u32_dpp v106, v106, v106 {ctl} bank_mask:0xf")
        a(f"ds_write_b32 v116, v106 offset:{L_GM}\nds_read_b32 v111, v117 offset:{L_GM}\nds_read_b128 v[112:115], v118 offset:{L_GM}")
        while t3: a(t3.pop(0))
        cnt4 = f"""
        v_cmp_gt_u32 s[28:29], v112, v111
        v_cmp_gt_u32 s[30:31], v113, v111
        v_cmp_gt_u32 s[32:33], v114, v111
        v_cmp_gt_u32 s[34:35], v115, v111
        v_addc_co_u32 v105, s[36:37], 0, v{vZ}, s[28:29]
        v_addc_co_u32 v105, s[36:37], 0, v105, s[30:31]
        v_addc_co_u32 v105, s[36:37], 0, v105, s[32:33]
        v_addc_co_u32 v105, s[36:37], 0, v105, s[34:35]
        """
        fold = """
        v_mov_b32 v112, v105
        v_permlane32_swap_b32 v105, v112
        v_add_u32 v105, v105, v112
        v_mov_b32 v112, v105
        v_permlane16_swap_b32 v105, v112
        v_add_u32 v105, v105, v112
        """
        a(f"""
        s_mov_b32 s62, 0
        L_GMW{X}:
        s_waitcnt lgkmcnt(0)
        v_cmp_eq_u32 vcc, 0, v111
        {cnt4}
        s_cbranch_vccz L_GMD{X}
        ds_read_b32 v111, v117 offset:{L_GM}
        ds_read_b128 v[112:115], v118 offset:{L_GM}
        s_add_u32 s62, s62, 1
        s_cmp_lt_u32 s62, {SPIN*64}
        s_cbranch_scc1 L_GMW{X}
        s_waitcnt lgkmcnt(0)
        L_GMD{X}:
        {fold}
        v_cmp_eq_u32 vcc, 7, v105
        s_ff1_i32_b64 s41, vcc
        s_and_b32 s41, s41, 63
        v_readlane_b32 s41, v111, s41          ; threshold: 8th largest group maximum
        v_cmp_le_u32 s[28:29], s41, v108
        v_cmp_le_u32 s[30:31], s41, v109
        v_cmp_le_u32 vcc, s41, v110
        v_mbcnt_lo_u32_b32 v112, s28, 0
        v_mbcnt_lo_u32_b32 v113, s30, 0
        v_mbcnt_hi_u32_b32 v112, s29, v112
        v_mbcnt_hi_u32_b32 v113, s31, v113
        v_min_u32 v112, 7, v112
        v_min_u32 v113, 7, v113
        v_lshl_add_u32 v112, v112, 2, s26
        v_lshlrev_b32 v113, 2, v113
        v_sub_u32 v113, s27, v113
        v_cndmask_b32 v112, v121, v112, s[28:29]
        v_cndmask_b32 v113, v121, v113, s[30:31]
        ds_write_b32 v112, v108 offset:{L_LIST}
        ds_write_b32 v113, v109 offset:{L_LIST}
        s_cbranch_vccnz L_TKF{X}
        s_bcnt1_i32_b64 s28, s[28:29]
        s_bcnt1_i32_b64 s30, s[30:31]
        s_add_u32 s28, s28, s30
        s_cmp_le_u32 s28, 8
        s_cbranch_scc1 L_TKP{X}
        L_TKF{X}:
        s_mov_b32 s41, 0
        L_TKFL{X}:
        v_max3_u32 v106, v{K[0]}, v{K[1]}, v{K[2]}
        v_max3_u32 v106, v106, v{K[3]}, v{K[4]}
        v_max3_u32 v106, v106, v{K[5]}, v{K[6]}
        v_max_u32 v106, v106, v{K[7]}
        """)
        for ctl in RED: a(f"v_max_u32_dpp v106, v106, v106 {ctl} bank_mask:0xf")
        a(f"v_readlane_b32 s28, v106, 63\ns_mov_b32 m0, s41\ns_nop 0\nv_writelane_b32 v105, s28, m0")
        for j in range(8): a(f"v_cmp_ne_u32 vcc, s28, v{K[j]}\nv_cndmask_b32 v{K[j]}, 0, v{K[j]}, vcc")
        a(f"""
        s_add_u32 s41, s41, 1
        s_cmp_lt_u32 s41, 8
        s_cbranch_scc1 L_TKFL{X}
        s_mov_b64 exec, 0xff
        ds_write_b32 v119, v105 offset:{L_LIST}
        s_mov_b64 exec, -1
        L_TKP{X}:
        s_mov_b64 exec, 1
        ds_add_u32 v{vZ}, v{vOne} offset:{F_TK}
        s_mov_b64 exec, -1
        s_mov_b32 s62, 0
        L_TKW{X}:
        ds_read_b32 v104, v{vZ} offset:{F_TK}
        ds_read_b32 v111, v119 offset:{L_LIST}
        ds_read_b128 v[112:115], v120 offset:{L_LIST}
        s_add_u32 s62, s62, 1
        s_waitcnt lgkmcnt(0)
        v_cmp_le_u32 vcc, 4, v104
        {cnt4}
        s_cbranch_vccnz L_TKD{X}
        s_cmp_lt_u32 s62, {SPIN*64}
        s_cbranch_scc1 L_TKW{X}
        L_TKD{X}:
        s_nop 0
        v_add_u32_dpp v105, v105, v105 row_ror:8 row_mask:0xf bank_mask:0xf
        {fold}
        v_cmp_gt_u32 vcc, 8, v105
        v_lshlrev_b32 v105, 2, v105
        v_cndmask_b32 v105, v122, v105, vcc
        ds_write_b32 v105, v111 offset:{L_SEL}
        """)

    TG = 253
    def rows_issue(RW):
        vec = f"""
        buffer_load_dword v{TG}, off, s[8:11], 0 sc1
        global_load_dwordx4 v[{RW+16}:{RW+19}], v8, s[28:29]
        global_load_dwordx4 v[{RW+20}:{RW+23}], v8, s[28:29] offset:1024
        global_load_dwordx4 v[{RW+24}:{RW+27}], v8, s[36:37]
        global_load_dwordx4 v[{RW+28}:{RW+31}], v8, s[36:37] offset:1024
        """
        if o['vfirst'] == 2: a(vec)
        a("s_barrier")
        if o['vfirst'] == 1: a(vec)
        a(f"""
        buffer_load_dwordx4 v[{RW}:{RW+3}], v8, s[4:7], s41 offen {o['rownt']}
        buffer_load_dwordx4 v[{RW+4}:{RW+7}], v8, s[4:7], s41 offen offset:1024 {o['rownt']}
        buffer_load_dwordx4 v[{RW+8}:{RW+11}], v8, s[4:7], s41 offen offset:2048 {o['rownt']}
        buffer_load_dwordx4 v[{RW+12}:{RW+15}], v8, s[4:7], s41 offen offset:3072 {o['rownt']}
        """)
        if o['vfirst'] == 0: a(vec)
        signal(F_RI)
    def rows_dots(RW, DA, nwait, X):
        a(f"""
        v_bfe_u32 v{DA+4}, v1, 4, 1
        v_lshrrev_b32 v{DA+5}, 5, v1
        v_lshlrev_b32 v{DA+4}, 1, v{DA+4}
        v_lshl_add_u32 v{DA+4}, v{DA+5}, 4, v{DA+4}
        s_lshl_b32 s41, s38, 2
        v_add_u32 v{DA+4}, s41, v{DA+4}       ; 16-bit slot of this lane row
        v_lshlrev_b32 v{DA+5}, 2, v1
        v_lshrrev_b32 v{DA+6}, 2, v1
        v_mul_u32_u24 v{DA+6}, {WS_GT - WS_RT - 32}, v{DA+6}
        v_lshl_add_u32 v{DA+6}, v1, 3, v{DA+6}
        s_lshl_b32 s27, s2, 5
        s_add_u32 s27, s27, {WS_RT}
        v_cmp_gt_u32 vcc, 32, v1
        s_waitcnt vmcnt({nwait})
        """)
        stamp(1)
        for k in range(8):
            for q, (rw, wv) in enumerate(((0, 16), (8, 16), (0, 24), (8, 24))):
                a(f"v_dot2_f32_bf16 v{DA+q}, v{RW+rw+k}, v{RW+wv+k}, {'0' if k == 0 else 'v%d' % (DA+q)}")
        a(f"""
        v_add_u32 v{TG}, {TAGC}, v{TG}
        v_permlane32_swap_b32 v{DA}, v{DA+2}
        v_permlane32_swap_b32 v{DA+1}, v{DA+3}
        v_add_f32 v{DA}, v{DA}, v{DA+2}
        v_add_f32 v{DA+1}, v{DA+1}, v{DA+3}
        ds_write_b32 v{vZ}, v{TG} offset:{L_TAG}
        v_permlane16_swap_b32 v{DA}, v{DA+1}
        v_add_f32 v{DA}, v{DA}, v{DA+1}
        """)
        for ctl in RED[:4]: a(f"v_add_f32_dpp v{DA}, v{DA}, v{DA} {ctl} bank_mask:0xf")
        a(f"""
        v_cvt_pk_bf16_f32 v{DA}, v{DA}, v{DA}
        v_and_b32 v{DA+1}, 0xffff0000, v{DA}
        v_mul_f32 v{DA+1}, 0xbfb8aa3b, v{DA+1}
        v_exp_f32 v{DA+1}, v{DA+1}
        v_ashrrev_i32 v{DA+2}, 31, v{DA}
        v_add_f32 v{DA+1}, 1.0, v{DA+1}
        v_rcp_f32 v{DA+1}, v{DA+1}
        v_or_b32 v{DA+2}, 0x8000, v{DA+2}
        v_xor_b32 v{DA}, v{DA}, v{DA+2}
        v_cvt_pk_bf16_f32 v{DA+1}, v{DA+1}, 0
        v_cndmask_b32 v{DA}, v{DA+1}, v{DA}, vcc
        ds_write_b16 v{DA+4}, v{DA} offset:{L_RK}
        s_mov_b64 exec, 1
        ds_add_rtn_u32 v10, v{vZ}, v{vOne} offset:{F_PUB}
        s_mov_b64 exec, 0xff
        ds_read_b32 v{TG-1}, v{DA+5} offset:{L_RK}
        s_waitcnt lgkmcnt(0)
        v_readfirstlane_b32 s41, v10
        s_cmp_lg_u32 s41, 3
        s_cbranch_scc1 L_NP{X}
        buffer_store_dwordx2 v[{TG-1}:{TG}], v{DA+6}, s[8:11], s27 offen sc1
        s_mov_b64 exec, 1
        ds_add_u32 v{vZ}, v{vOne} offset:{F_PUB}
        L_NP{X}:
        s_mov_b64 exec, -1
        """)
    nt = o['rownt']
    a(f"""
    s_cmp_ge_u32 s2, 256
    s_cbranch_scc1 L_END
    s_getpc_b64 s[48:49]
    L_PC:
    s_lshr_b32 s40, s2, 3
    s_lshl_b32 s41, s40, 10
    v_lshl_add_u32 v9, v0, 1, s41
    v_min_u32 v9, L_END-L_PC, v9
    global_load_ushort v255, v9, s[48:49]
    s_load_dwordx8 s[16:23], s[0:1], 8
    s_load_dwordx4 s[24:27], s[0:1], 40
    s_load_dwordx2 s[4:5], s[0:1], 0
    s_load_dwordx2 s[8:9], s[0:1], 120
    s_load_dwordx8 s[28:35], s[0:1], 64
    s_load_dwordx2 s[36:37], s[0:1], 96
    s_load_dwordx2 s[12:13], s[0:1], 104
    v_readfirstlane_b32 s3, v0
    v_and_b32 v1, 63, v0
    v_mov_b32 v{vZ}, 0
    v_mov_b32 v{vOne}, 1
    v_lshlrev_b32 v8, 4, v1
    s_mov_b32 s6, 0x400000
    s_mov_b32 s7, 0x20000
    s_mov_b32 s10, {OOB}
    s_mov_b32 s11, 0x20000
    s_mov_b32 s14, 0x400000
    s_mov_b32 s15, 0x20000
    s_lshr_b32 s3, s3, 6
    s_and_b32 s41, s2, 7
    s_lshr_b32 s40, s2, 4
    """)
    if o['stamps']:
        for i in range(16): a(f"s_mov_b64 s[{64+2*i}:{65+2*i}], 0")
        stamp(0)
    a(f"""
    s_bfe_u32 s47, s2, 0x10003
    s_and_b32 s38, s3, 3
    s_cmp_ge_u32 s3, 4
    s_cbranch_scc1 L_N0
    s_xor_b32 s41, s41, s47
    s_lshl_b32 s39, s41, 4
    s_add_u32 s39, s39, s40
    s_lshl_b32 s41, s39, 1
    s_add_u32 s41, s41, s47
    s_lshl_b32 s41, s41, 2
    s_add_u32 s41, s41, s3                ; d
    s_lshl_b32 s42, s41, 8
    v_lshl_add_u32 v4, v1, 2, s42
    s_lshl_b32 s42, s41, 1
    v_mov_b32 v5, s42
    v_mov_b32 v12, 0
    v_mov_b32 v13, 0
    s_waitcnt lgkmcnt(0)
    global_load_short_d16_hi v12, v5, s[24:25]
    global_load_dword v8, v4, s[16:17]
    global_load_dword v9, v4, s[18:19]
    global_load_dword v10, v4, s[20:21]
    global_load_dword v11, v4, s[22:23]
    global_load_short_d16_hi v13, v5, s[26:27]
    s_barrier
    s_setprio {o['aprio']}
    s_branch L_S
    L_N0:
    v_lshlrev_b32 v4, 2, v0
    v_and_b32 v4, 1023, v4
    ds_write_b32 v4, v{vZ}
    s_lshl_b32 s39, s41, 4
    s_add_u32 s39, s39, s40
    s_setprio {o['bprio']}
    s_lshl_b32 s41, s2, 14
    s_lshl_b32 s42, s38, 12
    s_add_u32 s41, s41, s42
    s_waitcnt lgkmcnt(0)
    """)
    RW = 208; UR = 176; UO = 208
    rows_issue(RW)
    a(f"""
    s_cmp_lg_u32 s47, 0
    s_cbranch_scc1 L_M0
    v_and_b32 v168, 255, v0
    v_lshlrev_b32 v169, 14, v168
    s_lshl_b32 s43, s39, 4
    v_add_u32 v169, s43, v169             ; rows 8t.. , this group's 16 bytes
    s_movk_i32 s16, 0x1000
    s_movk_i32 s17, 0x2000
    s_movk_i32 s18, 0x3000
    s_and_b32 s19, s40, 7
    """)
    lwait(F_RI, 4, 10, sleep=1)
    if o['mdelay']: a(f"s_sleep {o['mdelay']}")
    def uload(j):
        so = ('0', 's16', 's17', 's18')[j >> 1]
        a(f"buffer_load_dwordx4 v[{UR+4*j}:{UR+4*j+3}], v169, s[4:7], {so} offen offset:{2048*(j&1)}")
    for j in range(8):
        L = a.lab('U'); a(f"s_cmp_lg_u32 s19, {j}\ns_cbranch_scc1 {L}"); uload(j); a(f"{L}:")
    a("s_branch L_S")

    wnt = o['wnt']; sc = o['slowc']
    decode = f"""
    s_and_b32 s41, s2, 7
    s_lshl_b32 s39, s40, 3
    s_add_u32 s39, s39, s41
    s_lshr_b32 s41, s39, 1                ; p
    s_mul_i32 s42, s41, 37
    s_lshr_b32 s42, s42, 8                ; p / 7
    s_mul_i32 s43, s42, 7
    s_sub_u32 s43, s41, s43               ; p % 7
    s_lshl_b32 s51, s42, 3
    s_add_u32 s51, s51, s43
    s_cmp_ge_u32 s43, {sc}
    s_addc_u32 s51, s51, 0
    s_sub_u32 s41, s41, 49
    s_lshr_b32 s42, s41, 1
    s_lshl_b32 s42, s42, 3
    s_add_u32 s42, s42, {sc}
    s_and_b32 s41, s41, 1
    s_cmp_ge_u32 s39, 98
    s_cselect_b32 s51, s42, s51           ; strip c
    s_cselect_b32 s50, s41, 0             ; K half
    s_cselect_b32 s63, 7, 8
    """
    BC, FB, FP, XO = 56, 88, 24, 216
    ffn2_prep = f"""
    v_and_b32 v15, 7, v1
    v_lshrrev_b32 v12, 4, v1
    v_mul_u32_u24 v14, {W2_G}, v12
    v_bfe_u32 v10, v1, 2, 2
    v_mul_u32_u24 v10, {W2_R}, v10
    v_add_u32 v14, v14, v10
    v_and_b32 v10, 3, v1
    v_lshl_add_u32 v14, v10, 3, v14
    s_lshl_b32 s41, s3, 7
    s_add_u32 s41, s41, {L_W2}
    v_add_u32 v14, s41, v14
    v_mul_u32_u24 v23, {HS_W}, v15
    v_lshl_add_u32 v23, v12, 4, v23
    v_add_u32 v23, {L_HS}, v23
    v_mul_u32_u24 v19, {H3S}, v12
    v_lshl_add_u32 v19, v15, 4, v19       ; H3 voffset
    s_and_b32 s60, s39, 1
    s_lshl_b32 s60, s60, 3
    s_add_u32 s60, s60, s3                ; 64-column block of the second layer
    s_mul_i32 s61, s60, {16*H3S}
    s_lshl_b32 s41, s51, 7
    s_add_u32 s61, s61, s41
    s_add_u32 s61, s61, {WS_H3}
    s_lshl_b32 s49, s51, 13
    s_add_u32 s49, s49, {WS_H2}
    v_and_b32 v18, 255, v0
    v_lshrrev_b32 v20, 5, v18
    v_and_b32 v21, 31, v18
    v_lshlrev_b32 v18, 3, v18             ; H2 voffset
    s_mov_b32 s42, 0x00ff00ff
    s_mov_b32 s43, 0x00ff00ff
    s_mov_b32 s18, 0x07060501
    s_mov_b32 s19, 0x07060502
    s_mov_b32 s20, 0x07060503
    """
    def w2_operands():
        lwait(F_W2, 4, 10, sleep=1)
        for t in range(4):
            for s_ in range(2):
                a(f"ds_read_b64_tr_b16 v[{BC+16*s_+4*t}:{BC+16*s_+4*t+1}], v14 offset:{4*s_*W2_G + 32*t}\nds_read_b64_tr_b16 v[{BC+16*s_+4*t+2}:{BC+16*s_+4*t+3}], v14 offset:{4*s_*W2_G + 4*W2_R + 32*t}")
        for i in range(4): a(f"v_mov_b32 v{FP+4*i+3}, v{TG}")

    RB = [56, 88, 120, 152]; SP = 24; ACC = 184
    a(f"""
    L_M0:
    {decode}
    s_cselect_b32 s46, 0, 7340032
    s_mov_b32 s47, 0x20000
    s_mov_b32 s58, 7340032
    s_mov_b32 s59, 0x20000
    s_lshl_b32 s41, s38, s63
    s_lshl_b32 s42, s50, 9
    s_add_u32 s61, s41, s42
    s_mul_i32 s52, s61, 7168
    s_lshl_b32 s41, s51, 7
    s_add_u32 s52, s52, s41               ; W1 soffset
    v_and_b32 v15, 7, v1
    v_lshrrev_b32 v16, 3, v1              ; rr
    v_mul_u32_u24 v13, {8*7168}, v16
    v_lshl_add_u32 v13, v15, 4, v13       ; W1 voffset
    s_bitcmp1_b32 s39, 0
    s_cselect_b32 s56, s32, s30
    s_cselect_b32 s57, s33, s31
    s_mov_b32 s44, s56
    s_mov_b32 s45, s57
    s_cmp_ge_u32 s39, 126
    s_cselect_b32 s58, 0, s58
    """)
    lwait(F_RI, 4, 10, sleep=1)
    if o['wdelay']: a(f"s_sleep {o['wdelay']}")
    for k in range(32):
        if k == o['nA']:
            rows_dots(RW, 240, o['nA'], 'M')
            a("s_setprio 0\ns_cmp_ge_u32 s39, 126\ns_cbranch_scc1 L_MEND")
            if o['pubw']: lwait(F_PUB, 5, 10, sleep=1)
            stamp(7)
        r = RB[k >> 3] + 4 * (k & 7)
        if k >= o['th']: a(f"s_waitcnt vmcnt({o['th'] - 1})")
        a(f"buffer_load_dwordx4 v[{r}:{r+3}], v13, {'s[56:59]' if k < 16 else 's[44:47]'}, s52 offen {wnt}\ns_add_u32 s52, s52, {7168 if (k & 7) != 7 else 57*7168}")
    stamp(4)
    a(f"""
    s_lshl_b32 s23, s61, 1                ; k offset in the row
    s_add_u32 s24, s23, 256
    s_lshl_b32 s22, s38, 12
    s_add_u32 s22, s22, {L_XS}
    s_mov_b32 s54, 0x05040100
    s_mov_b32 s55, 0x07060302
    """)
    lwait(F_KA, 4, 10, sleep=2)
    stamp(8)
    a(ffn2_prep)
    a(f"""
    v_and_b32 v11, 15, v1
    v_lshlrev_b32 v6, 1, v12
    v_xor_b32 v6, v6, v11
    v_lshlrev_b32 v6, 4, v6               ; source chunk of the gather (tokens 0-3)
    v_xor_b32 v7, 128, v6                 ; tokens 4-7
    v_lshlrev_b32 v9, 2, v12
    v_lshlrev_b32 v10, 1, v15
    v_xor_b32 v10, v10, v16
    v_lshlrev_b32 v10, 4, v10
    v_lshl_add_u32 v10, v15, 8, v10
    v_xor_b32 v251, 128, v10
    v_add_u32 v250, s22, v10
    v_add_u32 v251, s22, v251
    v_mul_u32_u24 v17, {P_T}, v15
    v_lshl_add_u32 v17, v12, 4, v17
    s_mul_i32 s41, s38, {P_W}
    s_add_u32 s41, s41, {L_P}
    v_add_u32 v17, s41, v17
    v_mul_u32_u24 v20, {P_T}, v20
    v_lshl_add_u32 v21, v21, 3, v20
    v_add_u32 v21, {L_P}, v21
    s_and_b32 s41, s39, 1
    s_lshl_b32 s48, s50, 1
    s_add_u32 s48, s48, s41
    s_lshl_b32 s48, s48, 11
    s_add_u32 s48, s48, s49
    """)
    OP = [SP] + RB[:3]
    def perm_set(s_, younger):
        a(f"s_waitcnt vmcnt({8 * (3 - s_) + younger})")
        for p in range(4):
            for e in range(8): a(f"v_perm_b32 v{OP[s_]+4*e+p}, v{RB[s_]+8*p+4+(e>>1)}, v{RB[s_]+8*p+(e>>1)}, s{54+(e&1)}")
    npre = o.get('npre', 2)
    for s_ in range(npre): perm_set(s_, 0)
    a("s_setprio 3\ns_mov_b32 m0, s22")
    stamp(9)
    selwait(4, 9, 1, vd2=5, extra="v_and_b32 v4, 2047, v4\nv_and_b32 v5, 2047, v5\nv_lshl_add_u32 v4, v4, 11, v6\nv_lshl_add_u32 v5, v5, 11, v7")
    for k in range(4):
        a(f"s_add_u32 s22, s22, 1024\nbuffer_load_dwordx4 v{4 + (k & 1)}, s[4:7], {'s23' if k < 2 else 's24'} offen lds")
        if k < 3: a("s_mov_b32 m0, s22")
    signal(F_GX)
    stamp(2)
    for s_ in range(npre, 4): perm_set(s_, 4)
    a("s_waitcnt vmcnt(0)")
    for s_ in range(4): a(f"ds_read_b128 v[{XO+4*s_}:{XO+4*s_+3}], v{250 + (s_ & 1)} offset:{2048 * (s_ >> 1)}")
    stamp(10)
    for s_ in range(4):
        a(f"s_waitcnt lgkmcnt({3 - s_})")
        for e in (0, 4, 1, 5, 2, 6, 3, 7):
            c = '0' if s_ == 0 else f"v[{ACC+4*e}:{ACC+4*e+3}]"
            a(f"v_mfma_f32_16x16x32_bf16 v[{ACC+4*e}:{ACC+4*e+3}], v[{OP[s_]+4*e}:{OP[s_]+4*e+3}], v[{XO+4*s_}:{XO+4*s_+3}], {c}")
    for e in range(4):
        for i in range(4): a(f"v_permlane32_swap_b32 v{ACC+4*e+i}, v{ACC+16+4*e+i}")
        for i in range(4): a(f"v_add_f32_dpp v{ACC+4*e+i}, v{ACC+16+4*e+i}, v{ACC+4*e+i} row_ror:8 row_mask:0xf bank_mask:0xf")
    a("s_mov_b64 exec, s[42:43]")
    for e in range(4): a(f"ds_write_b128 v17, v[{ACC+4*e}:{ACC+4*e+3}] offset:{64*e}")
    signal(F_P)
    PR = ACC + 16
    ex = '\n'.join(f"ds_read_b64 v[{PR+2*w}:{PR+2*w+1}], v21 offset:{P_W*w}" for w in range(4))
    lwait(F_P, 4, 10, extra=ex, sleep=0)
    for d, s_ in ((0, 1), (2, 3), (0, 2)):
        a(f"v_pk_add_f32 v[{PR+2*d}:{PR+2*d+1}], v[{PR+2*d}:{PR+2*d+1}], v[{PR+2*s_}:{PR+2*s_+1}]")
    a(f"v_cvt_pk_bf16_f32 v{TG-1}, v{PR}, v{PR+1}\nbuffer_store_dwordx2 v[{TG-1}:{TG}], v18, s[8:11], s48 offen sc1")
    signal(F_H2P)
    stamp(3)
    a("s_cmp_lg_u32 s50, 0\ns_cbranch_scc1 L_MEND\ns_setprio 1")
    w2_operands()
    a("L_FFN2:")
    ex = '\n'.join(f"ds_read_b128 v[{XO+4*s_}:{XO+4*s_+3}], v23 offset:{64*s_}" for s_ in range(2))
    lwait(F_H, 4, 10, extra=ex, sleep=o.get('hsleep', 0))
    for t in range(4):
        for s_ in range(2):
            c = '0' if s_ == 0 else f"v[{FB+4*t}:{FB+4*t+3}]"
            a(f"v_mfma_f32_16x16x32_bf16 v[{FB+4*t}:{FB+4*t+3}], v[{BC+16*s_+4*t}:{BC+16*s_+4*t+3}], v[{XO+4*s_}:{XO+4*s_+3}], {c}")
    a("s_mov_b64 exec, s[42:43]")
    for t in range(4):
        for e in range(3): a(f"v_perm_b32 v{FP+4*t+e}, v{FB+4*t+e}, v{FB+4*t+3}, s{18+e}")
        a(f"buffer_store_dwordx4 v[{FP+4*t}:{FP+4*t+3}], v19, s[8:11], s61 offen sc1")
        if t < 3: a(f"s_add_u32 s61, s61, {4*H3S}")
    stamp(12)
    a("L_MEND:")
    finish()

    a(f"""
    L_S:
    s_mul_i32 s43, s3, {SCR_S}
    s_add_u32 s43, s43, {L_SCR}
    s_mul_i32 s44, s3, {UT_W}
    s_add_u32 s44, s44, {L_UT}
    s_mul_i32 s45, s3, {KA_S}
    s_add_u32 s45, s45, {L_KA}
    s_add_u32 s46, s43, {TAB_O}
    s_mov_b32 m0, s43
    s_mov_b32 s48, 0xffff0000
    """)
    a(f"""
    s_and_b32 s41, s3, 3
    s_lshl_b32 s49, s39, 2
    s_add_u32 s49, s49, s41
    s_lshl_b32 s49, s49, 11
    s_add_u32 s49, s49, {WS_KX}           ; hand-off slot of this channel's kernel table
    """)
    a(f"""
    v_mov_b32 v16, 0
    v_mov_b32 v17, 0
    v_mov_b32 v18, 0
    v_mov_b32 v19, 0
    v_lshl_add_u32 v14, v1, 3, s44
    v_lshl_add_u32 v15, v1, 4, s45
    s_mov_b32 exec_hi, 0x0fffffff
    ds_write_b64 v14, v[16:17]
    s_mov_b64 exec, -1
    """)
    for k in range(4): a(f"ds_write_b128 v15, v[16:19] offset:{1024*k}")
    a(f"""
    v_mov_b32 v29, 0x3f803f80
    ds_write_addtid_b32 v29
    ds_write_addtid_b32 v16 offset:256
    v_and_b32 v17, 15, v1                 ; j / n
    v_lshrrev_b32 v18, 4, v1              ; c / q
    v_mul_u32_u24 v19, {SCR_W}, v17
    v_lshl_add_u32 v19, v18, 4, v19
    v_add_u32 v19, s43, v19
    v_and_b32 v20, 31, v1                 ; zero fill of the full-resolution arrays: dwords 0..15 and 272..287 of both
    v_lshrrev_b32 v21, 4, v20
    v_lshl_add_u32 v20, v21, 8, v20
    v_lshrrev_b32 v21, 5, v1
    v_mul_u32_u24 v21, {E0A - E1A}, v21
    v_lshl_add_u32 v20, v20, 2, v21
    v_add_u32 v20, s43, v20
    v_lshlrev_b32 v4, 5, v17
    v_lshl_add_u32 v4, v18, 4, v4
    v_add_u32 v4, s44, v4
    v_and_b32 v6, 3, v17
    v_mul_u32_u24 v6, 320, v6
    v_lshrrev_b32 v21, 2, v17
    v_sub_u32 v21, v18, v21
    v_lshl_add_u32 v6, v21, 4, v6
    v_add3_u32 v170, v6, 48, s45          ; K2/K3 base
    v_lshlrev_b32 v7, 5, v17
    v_lshl_add_u32 v7, v18, 3, v7
    s_add_u32 s41, s44, {UT_PAD}
    v_add_u32 v5, s41, v7
    v_lshlrev_b32 v6, 1, v7
    v_add_u32 v6, {L_G}, v6
    v_add_u32 v7, s43, v7
    v_and_b32 v21, 1, v17
    v_mul_u32_u24 v21, {E0A - E1A}, v21
    v_lshrrev_b32 v22, 1, v17
    v_lshl_add_u32 v21, v22, 2, v21
    v_lshlrev_b32 v22, 4, v18
    v_sub_u32 v21, v22, v21
    s_add_u32 s41, s43, {E0A + 28}
    v_add_u32 v162, s41, v21
    v_mov_b32 v21, 0x3000
    v_lshlrev_b32 v21, v17, v21
    v_lshlrev_b32 v22, 3, v18
    v_lshrrev_b32 v21, v22, v21
    s_mov_b32 s41, 0x10001
    """)
    for q in range(4):
        a(f"v_bfe_u32 v22, v21, {2*q}, 2\nv_lshl_or_b32 v22, v22, 15, v22\nv_and_b32 v22, s41, v22\nv_mul_u32_u24 v{164+q}, 0xffff, v22")
    a(f"""
    v_lshlrev_b32 v25, 5, v17             ; tile0: (8n + 4(q&1) + 128(q>>1))*4
    v_and_b32 v26, 1, v18
    v_lshl_add_u32 v25, v26, 4, v25
    v_lshrrev_b32 v27, 1, v18
    v_lshl_add_u32 v25, v27, 9, v25
    v_add_u32 v25, s46, v25
    v_lshlrev_b32 v28, 4, v17
    v_lshl_add_u32 v28, v26, 8, v28
    v_add_u32 v28, {256*4}, v28
    v_lshlrev_b32 v29, 3, v17
    v_lshl_add_u32 v29, v26, 8, v29
    v_add_u32 v29, {384*4}, v29
    v_cmp_eq_u32 vcc, 1, v27
    v_mov_b32 v30, 8
    v_mov_b32 v31, 128
    v_cndmask_b32 v26, v28, v29, vcc
    v_cndmask_b32 v27, v30, v31, vcc
    v_add_u32 v26, s46, v26
    v_add_u32 v27, v26, v27
    v_lshlrev_b32 v28, 2, v17             ; tile2: (512 + n + 64q)*4 + 64*i
    v_lshl_add_u32 v28, v18, 8, v28
    v_add_u32 v28, s46, v28
    v_add_u32 v28, {512*4}, v28
    v_cmp_eq_u32 vcc, 0, v1
    s_cmp_ge_u32 s3, 4
    s_cbranch_scc1 L_B
    s_waitcnt vmcnt(0)
    """)
    stamp(1); cstamp(8)
    A_, B_ = 32, 34
    W1, W2, W4, W8, W128 = 36, 40, 44, 48, 52
    BASE, CH0, T0, T1 = 56, 60, 64, 66
    BOP, AOP, KAC, PK = 68, 100, 132, 144
    a(f"""
    v_mul_f32 v12, {LOG2E}, v12
    v_lshlrev_b32 v32, 16, v8
    v_and_b32 v33, s48, v8
    v_exp_f32 v12, v12
    v_mul_f32 v32, {LOG2E}, v32
    v_mul_f32 v33, {LOG2E}, v33
    v_exp_f32 v32, v32
    v_exp_f32 v33, v33
    v_cvt_pk_bf16_f32 v12, v12, v12
    v_lshlrev_b32 v34, 16, v9
    v_and_b32 v35, s48, v9
    v_cvt_pk_bf16_f32 v8, v32, v33
    v_and_b32 v12, s48, v12               ; dt
    v_lshlrev_b32 v32, 16, v8
    v_and_b32 v33, s48, v8
    v_mul_f32 v34, v34, v12
    v_mul_f32 v35, v35, v12
    v_mul_f32 v32, v32, v12
    v_mul_f32 v33, v33, v12
    v_mul_f32 v34, 0.15915494, v34
    v_mul_f32 v35, 0.15915494, v35
    v_mul_f32 v32, 0xbfb8aa3b, v32
    v_mul_f32 v33, 0xbfb8aa3b, v33
    v_mul_f32 v12, -2.0, v12              ; -2*dt: the kernel is generated negated
    v_cndmask_b32 v13, 0, v13, vcc
    v_lshlrev_b32 v{BASE}, 16, v10
    v_and_b32 v{BASE+1}, s48, v10
    v_lshlrev_b32 v{BASE+2}, 16, v11
    v_and_b32 v{BASE+3}, s48, v11
    v_mul_f32 v{BASE}, v{BASE}, v12
    v_mul_f32 v{BASE+1}, v{BASE+1}, v12
    v_mul_f32 v{BASE+2}, v{BASE+2}, v12
    v_mul_f32 v{BASE+3}, v{BASE+3}, v12
    """)
    def direct(W, k, conj):
        lit = {1: None, 8: '0x41000000', 128: '0x43000000'}[k]
        ta, tb = (T0, T1) if lit else (A_, B_)
        if lit:
            for m in range(2): a(f"v_mul_f32 v{T0+m}, {lit}, v{A_+m}\nv_mul_f32 v{T1+m}, {lit}, v{B_+m}")
        for m in range(2): a(f"v_rndne_f32 v{W+m}, v{tb+m}\nv_exp_f32 v{T0+m}, v{ta+m}")
        for m in range(2):
            if conj: a(f"v_sub_f32 v{T1+m}, v{W+m}, v{tb+m}")
            else: a(f"v_sub_f32 v{T1+m}, v{tb+m}, v{W+m}")
        for m in range(2): a(f"v_cos_f32 v{W+m}, v{T1+m}\nv_sin_f32 v{W+2+m}, v{T1+m}")
        a(f"v_pk_mul_f32 v[{W}:{W+1}], v[{W}:{W+1}], v[{T0}:{T0+1}]\nv_pk_mul_f32 v[{W+2}:{W+3}], v[{W+2}:{W+3}], v[{T0}:{T0+1}]")
    def cmul(D, X, W):
        a(f"""
        v_pk_mul_f32 v[{T0}:{T0+1}], v[{X+2}:{X+3}], v[{W+2}:{W+3}]
        v_pk_mul_f32 v[{T1}:{T1+1}], v[{X+2}:{X+3}], v[{W}:{W+1}]
        v_pk_fma_f32 v[{D+2}:{D+3}], v[{X}:{X+1}], v[{W+2}:{W+3}], v[{T1}:{T1+1}]
        v_pk_fma_f32 v[{D}:{D+1}], v[{X}:{X+1}], v[{W}:{W+1}], v[{T0}:{T0+1}] neg_lo:[0,0,1] neg_hi:[0,0,1]
        """)
    batch = []
    def emit(X, row):
        p = PK + 2 * len(batch)
        a(f"v_cvt_pk_bf16_f32 v{p+1}, v{X+2}, v{X+3}\nv_cvt_pk_bf16_f32 v{p}, v{X}, v{X+1}")
        batch.append((p, row))
    def tile_mfma(t, nwait):
        a(f"s_waitcnt lgkmcnt({nwait})\n.p2align 3")
        for ks in range(8):
            c = '0' if ks == 0 else f"v[{KAC+4*t}:{KAC+4*t+3}]"
            a(f"v_mfma_f32_16x16x32_bf16 v[{KAC+4*t}:{KAC+4*t+3}], v[{AOP+4*ks}:{AOP+4*ks+3}], v[{BOP+4*ks}:{BOP+4*ks+3}], {c}")
    def flush():
        for p, row in batch:
            a(f"ds_write_addtid_b32 v{p} offset:{row*SCR_W}\nds_write_addtid_b32 v{p+1} offset:{row*SCR_W+256}")
        batch.clear()
    def reads(R):
        flush()
        for ks in range(8): a(f"ds_read_b128 v[{R+4*ks}:{R+4*ks+3}], v19 offset:{64*ks}")
    direct(W8, 8, True)
    a(".p2align 3")
    emit(W8, 1)
    cmul(CH0, W8, W8); emit(CH0, 2)
    for b in range(3, 16):
        cmul(CH0, CH0, W8); emit(CH0, b)
        if b == 7: flush()
    reads(BOP)
    stamp(3)
    direct(W1, 1, False)
    direct(W128, 128, False)
    a(".p2align 3")
    cmul(W2, W1, W1); cmul(W4, W2, W2)
    for j in range(2):
        if j: cmul(BASE, BASE, W128)
        emit(BASE, 8 * j)
        for i in range(1, 8):
            cmul(CH0, BASE if i == 1 else CH0, W1); emit(CH0, 8 * j + i)
        flush()
    reads(AOP)
    row = 0
    for j in range(2):
        cmul(BASE, BASE, W128); emit(BASE, row); row += 1
        for i in range(1, 4):
            cmul(CH0, BASE if i == 1 else CH0, W2); emit(CH0, row); row += 1
    def mfma_with_writes(t):
        a("s_waitcnt lgkmcnt(0)\n.p2align 3")
        wr = [x for p, row in batch for x in (f"ds_write_addtid_b32 v{p} offset:{row*SCR_W}", f"ds_write_addtid_b32 v{p+1} offset:{row*SCR_W+256}")]
        batch.clear()
        for ks in range(8):
            c = '0' if ks == 0 else f"v[{KAC+4*t}:{KAC+4*t+3}]"
            a(f"v_mfma_f32_16x16x32_bf16 v[{KAC+4*t}:{KAC+4*t+3}], v[{AOP+4*ks}:{AOP+4*ks+3}], v[{BOP+4*ks}:{BOP+4*ks+3}], {c}")
            a(wr.pop(0)); a(wr.pop(0))
        while wr: a(wr.pop(0))
    mfma_with_writes(0)
    for j in range(4):
        cmul(BASE, BASE, W128); emit(BASE, row); row += 1
        cmul(CH0, BASE, W4); emit(CH0, row); row += 1
    reads(AOP)
    for j in range(9):
        cmul(BASE, BASE, W128); emit(BASE, j)
    mfma_with_writes(1)
    reads(AOP)
    def post_head():
        a(f"""
        v_lshl_add_u32 v30, v1, 3, s46
        v_lshl_add_u32 v31, v1, 4, s46
        v_sub_u32 v32, 63, v1
        v_lshl_add_u32 v35, v32, 3, s43       ; arrays + 8*(63-i)
        s_add_u32 s41, s45, {K3A + 240 - 252}
        v_lshl_add_u32 v34, v32, 2, s41
        v_lshrrev_b32 v32, 1, v32
        v_and_b32 v33, 1, v1
        v_mul_u32_u24 v33, 1280, v33
        v_lshl_add_u32 v33, v32, 2, v33
        s_add_u32 s41, s45, {K2X + 52}
        v_add_u32 v33, s41, v33
        v_mov_b32 v36, s46
        ds_write_b128 v25, v[{KAC}:{KAC+3}]
        ds_write_b64 v26, v[{KAC+4}:{KAC+5}]
        ds_write_b64 v27, v[{KAC+6}:{KAC+7}]
        ds_read_b128 v[40:43], v31
        ds_read_b32 v47, v31 offset:16
        ds_read_b64 v[44:45], v30 offset:{256*4}
        ds_read_b32 v46, v30 offset:{258*4}
        ds_write_b32 v20, v16
        """)
    KO = 40
    a(f"v_sub_f32 v{KAC}, v{KAC}, v13\ns_cmp_eq_u32 s47, 0\ns_cbranch_scc1 L_A")
    a(f"v_lshlrev_b32 v8, 4, v1")
    signal(F_KA)
    lwait(F_PUB, 1, 10, extra=f"ds_read_b32 v{TG}, v{vZ} offset:{L_TAG}", sleep=1)
    tile_mfma(2, 0)
    a(f"s_setprio 3\nv_mov_b32 v{KO+3}, v{TG}\nv_mov_b32 v{KO+7}, v{TG}\ns_mov_b32 s21, 0xffff0000\nv_lshrrev_b32 v12, 4, v1")
    for t in range(3):
        for i in range(2): a(f"v_cvt_pk_bf16_f32 v{KO+4*i+t}, v{KAC+4*t+2*i}, v{KAC+4*t+2*i+1}")
    for i in range(2): a(f"buffer_store_dwordx4 v[{KO+4*i}:{KO+4*i+3}], v8, s[8:11], s49 offen offset:{1024*i} sc1")
    stamp(2); cstamp(9)
    if o['stamps']: a("s_sub_u32 s82, s82, s80")
    a(f"""
    s_mov_b32 s44, s34
    s_mov_b32 s45, s35
    {decode}
    s_cselect_b32 s17, -1, 0
    s_cmp_ge_u32 s39, 126
    s_cbranch_scc1 L_MEND
    s_cmp_eq_u32 s50, 0
    s_cselect_b32 s46, 7340032, 0
    s_mov_b32 s47, 0x20000
    s_lshl_b32 s53, s51, 17
    s_and_b32 s41, s39, 1
    s_lshl_b32 s41, s41, 10
    s_add_u32 s53, s53, s41
    s_lshl_b32 s41, s38, 11
    s_add_u32 s53, s53, s41               ; W2 rows w + 8i (LDS group 2w), then w + 4 + 8i (group 2w+1)
    s_mul_i32 s16, s38, {2*W2_G}
    s_add_u32 s16, s16, {L_W2}
    s_lshl_b32 s41, s38, 11
    v_add_u32 v135, s41, v8
    s_mov_b32 s25, {WS_RT}
    """)
    n2 = [0]
    def w2(n):
        for _ in range(min(n, 16 - n2[0])):
            k = n2[0]
            a(f"s_mov_b32 m0, s16\ns_add_u32 s16, s16, {W2_R if k != 7 else W2_G - 7*W2_R}\nbuffer_load_dwordx4 v8, s[44:47], s53 offen {wnt} lds")
            a(f"s_add_u32 s53, s53, {8*2048}" if k != 7 else f"s_sub_u32 s53, s53, {52*2048}")
            n2[0] += 1
    if o['rdelay']: a(f"s_sleep {o['rdelay']}")
    def kwin():
        topk_prep(); w2(o['nD'])
    gpoll(rt_loads, [(r, f'v{TG}') for r in (89, 91, 93, 95)], 10, 4, mid=topk_keys, between=kwin, nb=o['nD'])
    stamp(4)
    if o['stamps']: a("s_mov_b32 s92, s62")
    topk('K')
    stamp(5)
    a(f"""
    s_setprio 2
    s_cmp_lg_u32 s38, 0
    s_cbranch_scc1 L_NS
    s_lshl_b32 s19, s39, 6
    s_add_u32 s19, s19, {WS_SEL}
    v_and_b32 v5, 7, v1
    v_lshlrev_b32 v4, 3, v5
    v_lshlrev_b32 v5, 2, v5
    """)
    selwait(TG - 1, 5, 0)
    a(f"s_mov_b64 exec, 0xff\nbuffer_store_dwordx2 v[{TG-1}:{TG}], v4, s[8:11], s19 offen sc1\ns_cmp_lg_u32 s39, 0\ns_cbranch_scc1 L_NS\ns_mov_b64 exec, 1\nbuffer_store_dword v{TG}, off, s[8:11], 0 sc1\nL_NS:\ns_mov_b64 exec, -1\ns_cmp_lg_u32 s50, 0\ns_cbranch_scc1 L_MEND")
    lwait(F_GX, 4, 10, sleep=1)
    w2(16)
    a(ffn2_prep)
    a(f"""
    v_mul_u32_u24 v22, {HS_W}, v20
    v_lshl_add_u32 v22, v21, 2, v22
    v_add_u32 v22, {L_HS}, v22
    v_and_b32 v254, s17, v{TG}
    s_add_u32 s16, s49, 4096
    s_cmp_lg_u32 s17, 0
    s_cselect_b32 s16, s16, {OOB}
    s_waitcnt vmcnt(0)
    """)
    signal(F_W2)
    stamp(11)
    lwait(F_H2P, 4, 10, sleep=1)
    H = 120; HU = 128
    if o['h2delay']: a(f"s_sleep {o['h2delay']}")
    gpoll(f"""buffer_load_dwordx2 v[{H}:{H+1}], v18, s[8:11], s49 offen sc1
    buffer_load_dwordx2 v[{H+2}:{H+3}], v18, s[8:11], s49 offen offset:2048 sc1
    buffer_load_dwordx2 v[{H+4}:{H+5}], v18, s[8:11], s16 offen sc1
    buffer_load_dwordx2 v[{H+6}:{H+7}], v18, s[8:11], s16 offen offset:2048 sc1""", [(H+1, f'v{TG}'), (H+3, f'v{TG}'), (H+5, 'v254'), (H+7, 'v254')], 10, 0, cnt='s63',
          mid='\n'.join(f"v_lshlrev_b32 v{HU+2*k}, 16, v{H+2*k}\nv_and_b32 v{HU+2*k+1}, s21, v{H+2*k}" for k in range(4)), between=w2_operands)
    stamp(6)
    if o['stamps']: a("s_mov_b32 s90, s63")
    a(f"""
    v_pk_add_f32 v[{HU}:{HU+1}], v[{HU}:{HU+1}], v[{HU+4}:{HU+5}]
    v_pk_add_f32 v[{HU+2}:{HU+3}], v[{HU+2}:{HU+3}], v[{HU+6}:{HU+7}]
    v_mul_f32 v{HU+4}, 0xbfb8aa3b, v{HU}
    v_mul_f32 v{HU+5}, 0xbfb8aa3b, v{HU+1}
    v_exp_f32 v{HU+4}, v{HU+4}
    v_exp_f32 v{HU+5}, v{HU+5}
    v_pk_mul_f32 v[{HU}:{HU+1}], v[{HU}:{HU+1}], v[{HU+2}:{HU+3}]
    v_add_f32 v{HU+4}, 1.0, v{HU+4}
    v_add_f32 v{HU+5}, 1.0, v{HU+5}
    v_rcp_f32 v{HU+4}, v{HU+4}
    v_rcp_f32 v{HU+5}, v{HU+5}
    v_pk_mul_f32 v[{HU}:{HU+1}], v[{HU}:{HU+1}], v[{HU+4}:{HU+5}]
    v_cvt_pk_bf16_f32 v10, v{HU}, v{HU+1}
    ds_write_b32 v22, v10
    """)
    signal(F_H)
    a("s_branch L_FFN2")

    a(f"""
    L_B:
    v_and_b32 v168, 255, v0
    v_lshlrev_b32 v169, 14, v168
    s_lshl_b32 s41, s39, 4
    v_add_u32 v169, s41, v169
    s_mov_b32 s24, 0x07c03800
    s_mov_b32 s25, 0x0fe00038
    s_lshl_b32 s41, s38, 4
    s_lshr_b64 s[24:25], s[24:25], s41
    s_and_b32 s24, s24, 0xffff
    s_mov_b32 s25, 0x1ff0
    s_mov_b32 s26, 0x10001
    s_lshl_b32 s41, s38, 10
    s_add_u32 s41, s41, {L_CB}
    v_lshlrev_b32 v12, 3, v18
    v_add_u32 v14, s41, v8
    v_add_u32 v15, {L_CB + 4096}, v8
    """)
    for k in range(2):
        a(f"v_lshlrev_b32 v10, v17, s{24+k}\nv_lshrrev_b32 v10, v12, v10")
        for q in range(4):
            a(f"v_bfe_u32 v11, v10, {2*q}, 2\nv_lshl_or_b32 v11, v11, 15, v11\nv_and_b32 v11, s26, v11\nv_mul_u32_u24 v{80+q}, 0x3f80, v11")
        a(f"ds_write_b128 v{14+k}, v[80:83]")
    a(f"""
    v_lshlrev_b32 v171, 4, v168
    v_add_u32 v171, {L_UT + UT_PAD}, v171
    s_lshl_b32 s41, s38, 11
    v_add_u32 v172, s41, v8
    v_add_u32 v173, {L_G}, v172
    s_mov_b32 s22, 0x05040100
    s_mov_b32 s23, 0x07060302
    s_mov_b32 s26, {WS_GT}
    """)
    rows_dots(RW, 240, 1, 'B')
    lwait(F_PUB, 5, 10, sleep=1)
    stamp(7)
    if not o['nearly']: a("s_cmp_eq_u32 s41, 3\ns_cbranch_scc1 L_MW\ns_waitcnt vmcnt(0)\nL_MW:\ns_waitcnt vmcnt(1)")
    if o['two']:
        a("s_cmp_lt_u32 s38, 2\ns_cbranch_scc1 L_C1")
        lwait(F_COL2, 2, 10, sleep=1)
        a("L_C1:")
    for j in range(o['nearly'], 8):
        L = a.lab('U'); a(f"s_cmp_eq_u32 s19, {j}\ns_cbranch_scc1 {L}"); uload(j); a(f"{L}:")
    signal(F_COL)
    lwait(F_COL, 2 if o['two'] else 4, 10, sleep=1)
    def transpose():
        if o['two']: signal(F_COL2)
        a("s_waitcnt vmcnt(2)")
        stamp(12)
        for d in range(8):
            for p in range(4):
                a(f"v_perm_b32 v{UO+4*d+p}, v{UR+8*p+4+(d>>1)}, v{UR+8*p+(d>>1)}, s{22+(d&1)}")
            if d % 2:
                for dd in (d - 1, d): a(f"ds_write_b128 v171, v[{UO+4*dd}:{UO+4*dd+3}] offset:{dd*UT_W}")
    gpoll("buffer_load_dwordx4 v[32:35], v172, s[8:11], s26 offen sc1\nbuffer_load_dwordx4 v[36:39], v172, s[8:11], s26 offen offset:1024 sc1",
          [(r, f'v{TG}') for r in (33, 35, 37, 39)], 10, 4, between=transpose,
          mid='\n'.join(f"v_lshlrev_b32 v{48+2*k}, 16, v{32+2*k}\nv_and_b32 v{49+2*k}, s48, v{32+2*k}" for k in range(4)))
    if o['stamps']: a("s_mov_b32 s90, s62")
    a("ds_write_b128 v173, v[48:51]\nds_write_b128 v173, v[52:55] offset:1024")
    if o['two']:
        a(f"s_lshr_b32 s41, s38, 1\ns_mul_i32 s41, s41, {F_UT2 - F_UT}\nv_mov_b32 v10, s41\ns_mov_b64 exec, 1\nds_add_u32 v10, v{vOne} offset:{F_UT}\ns_mov_b64 exec, -1")
    else: signal(F_UT)
    a(f"s_setprio {o['pprio']}")
    if o['kdelay']: a(f"s_sleep {o['kdelay']}")
    gpoll('\n'.join(f"buffer_load_dwordx4 v[{KO+4*i}:{KO+4*i+3}], v8, s[8:11], s49 offen offset:{1024*i} sc1" for i in range(2)),
          [(KO + 4 * i + 3, f'v{TG}') for i in range(2)], 12, 4,
          mid='\n'.join(f"v_lshlrev_b32 v{KAC+4*t+2*i}, 16, v{KO+4*i+t}\nv_and_b32 v{KAC+4*t+2*i+1}, s48, v{KO+4*i+t}" for t in range(3) for i in range(2)))
    stamp(3); cstamp(8)
    if o['stamps']: a("s_mov_b32 s92, s62")
    post_head()
    a("s_branch L_POST\nL_A:")
    post_head()
    tile_mfma(2, 8)
    a("L_POST:")
    stamp(4)
    a(f"""
    s_waitcnt lgkmcnt(0)
    v_cvt_pk_bf16_f32 v56, v43, v42
    v_cvt_pk_bf16_f32 v57, v41, v40
    v_cvt_pk_bf16_f32 v58, v47, v43
    v_cvt_pk_bf16_f32 v59, v42, v41
    v_cvt_pk_bf16_f32 v60, v46, v45
    v_cvt_pk_bf16_f32 v61, v44, v44
    v_cvt_pk_bf16_f32 v62, v46, v46
    v_cvt_pk_bf16_f32 v63, v45, v44
    v_cvt_pk_bf16_f32 v64, 0, v46
    v_cvt_pk_bf16_f32 v65, v40, 0
    v_add_u32 v163, 512, v162
    ds_write2_b32 v28, v{KAC+8}, v{KAC+9} offset0:0 offset1:16
    ds_write2_b32 v28, v{KAC+10}, v{KAC+11} offset0:32 offset1:48
    ds_read_b32 v48, v30 offset:{385*4}
    ds_read_b32 v49, v30 offset:{386*4}
    ds_read_b32 v50, v30 offset:{513*4}
    ds_read_b32 v51, v30 offset:{514*4}
    ds_read_b32 v52, v36 offset:{512*4}
    ds_write_b64 v35, v[56:57] offset:{E1A + 576}
    ds_write_b64 v35, v[58:59] offset:{E0A + 572}
    ds_write_b64 v35, v[60:61] offset:{E1A + 64}
    ds_write_b64 v35, v[62:63] offset:{E0A + 60}
    s_mov_b64 exec, 1
    ds_write_b32 v35, v65 offset:{E0A + 1084 - 504}
    s_mov_b32 exec_lo, 0
    s_brev_b32 exec_hi, 1
    ds_write_b32 v35, v64 offset:{E1A + 56}
    ds_write_b32 v35, v62 offset:{E1A + 60}
    ds_write_b32 v35, v62 offset:{E0A + 56}
    s_mov_b64 exec, -1
    s_waitcnt lgkmcnt(8)
    v_cvt_pk_bf16_f32 v144, v48, v49
    v_cvt_pk_bf16_f32 v145, v50, v51
    v_cvt_pk_bf16_f32 v146, v52, v52
    ds_write2_b32 v33, v144, v144 offset0:0 offset1:81
    ds_write2_b32 v33, v144, v144 offset0:162 offset1:243
    ds_write2_b32 v34, v145, v145 offset0:0 offset1:81
    ds_write2_b32 v34, v145, v145 offset0:162 offset1:243
    """)
    AF, A33, AFIX, RK2, RK3, RC, SL0 = 12, 76, 80, 84, 108, 124, 144
    for q in range(4): a(f"v_and_b32 v{AFIX+q}, v146, v{164+q}")
    a(f"s_lshl_b32 s41, s3, 2\nv_mov_b32 v8, s41\nv_lshlrev_b32 v9, 4, v1\nv_add_u32 v9, {L_CB}, v9")
    res = {}
    for k in range(17):
        de = 2 * k + 1; off = 264 - 8 * de; r = AF + 4 * k
        v, off = (163, off - 128) if off >= 128 else (162, off)
        a(f"ds_read2_b32 v[{r}:{r+1}], v{v} offset0:{off} offset1:{off+1}\nds_read2_b32 v[{r+2}:{r+3}], v{v} offset0:{off+2} offset1:{off+3}")
    a("v_mov_b32 v11, v170")
    for al in (2, 3, 4):
        for h in range(2):
            r = RK2 + 8 * (al - 2) + 4 * h; res[r] = [f"ds_read_b128 v[{r}:{r+3}], v11 offset:{(K2Y if h else K2X) + 4 * (64 - 16 * al)}"]
    for al in range(4, 8):
        r = RK3 + 4 * (al - 4); res[r] = [f"ds_read_b128 v[{r}:{r+3}], v11 offset:{K3A + 4 * (112 - 16 * al)}"]
    for k in range(5): res[RC + 4 * k] = [f"ds_read_b128 v[{RC+4*k}:{RC+4*k+3}], v9 offset:{1024*k}"]
    if not o['lazy']:
        lwait(F_PUB, 4, 10, sleep=1)
        for r in res: a(res[r][0])
        res = {}
    stamp(2); cstamp(9)
    lwait(F_UT, 2 if o['two'] else 4, 10, sleep=1)
    a(f"s_cmp_lt_u32 s3, 4\ns_cbranch_scc1 L_CP\ns_setprio 0\nL_CP:")
    stamp(5); cstamp(10)
    info = conv3_stream(a, 4, 5, 6, 7, 8, vOne, sig, UT_PAD, AF, A33, AFIX, RK2, RK3, RC, SL0, 28, 's48', lead=o['lead'], look=o['look'], epilag=o['epilag'], lazy_res=res, gate=(4, F_UT2, 2, vZ, 10, SPIN * 64) if o['two'] else None)
    if kw.get('verbose'): print(info, LDS_BYTES)
    stamp(6); cstamp(11)
    if o['stamps']: a("s_sub_u32 s82, s82, s80\ns_sub_u32 s86, s86, s84")
    a("s_cmp_ge_u32 s3, 4\ns_cbranch_scc1 L_EEND")

    a(f"""
    s_setprio {o['oprio']}
    ds_read_b32 v49, v{vZ} offset:{L_TAG}
    v_and_b32 v12, 7, v1
    v_lshlrev_b32 v13, 3, v12
    s_and_b32 s41, s2, 7
    s_lshl_b32 s24, s40, 3
    s_add_u32 s24, s24, s41
    s_min_u32 s24, s24, 125
    s_lshl_b32 s24, s24, 6
    s_add_u32 s24, s24, {WS_SEL}
    """)
    def oprep():
        a(f"""
        v_lshlrev_b32 v8, 4, v1
        v_lshlrev_b32 v12, 2, v12
        v_bfe_u32 v10, v1, 2, 2
        v_lshrrev_b32 v11, 4, v1
        v_and_b32 v50, 3, v1
        v_lshlrev_b32 v51, 5, v11
        v_lshl_add_u32 v51, v50, 3, v51
        v_mul_u32_u24 v54, {SCR_S}, v10
        s_lshl_b32 s41, s38, 7
        s_add_u32 s41, s41, {L_SCR}
        v_add3_u32 v54, v54, v51, s41
        v_lshlrev_b32 v58, 11, v0
        s_lshl_b32 s41, s39, 4
        v_add_u32 v58, s41, v58
        v_lshrrev_b32 v17, 1, v11
        v_and_b32 v18, 1, v11
        v_lshl_or_b32 v17, v18, 1, v17
        s_lshl_b32 s41, s38, 2
        v_add_u32 v17, s41, v17               ; channel of this lane row (fix-up)
        s_lshl_b32 s44, s39, 1
        s_add_u32 s44, s44, s38
        s_mul_i32 s44, s44, {H3S}
        s_add_u32 s44, s44, {WS_H3}
        s_cmp_lt_u32 s38, 2
        s_cselect_b32 s44, s44, {OOB}
        s_add_u32 s45, s44, 4096
        s_mov_b32 s46, 0x0c04000c
        s_mov_b32 s47, 0x04020100
        s_brev_b32 s50, 1
        s_waitcnt lgkmcnt(0)
        """)
    gpoll("buffer_load_dwordx2 v[34:35], v13, s[8:11], s24 offen sc1",
          [(35, 'v49')], 28, 8, between=oprep)
    stamp(7)
    a(f"""
    v_and_b32 v21, 2047, v34
    v_and_b32 v38, 0xfc, v21
    v_and_b32 v37, 3, v21
    v_lshrrev_b32 v39, 8, v21
    v_lshl_add_u32 v37, v37, 3, v39
    v_lshlrev_b32 v39, v37, v{vOne}
    s_mov_b64 exec, 0xff
    ds_or_b32 v38, v39 offset:{L_MK}
    s_mov_b64 exec, -1
    ds_read_u8 v59, v0 offset:{L_MK}
    v_lshlrev_b32 v22, 2, v21
    v_add_u32 v22, {L_G}, v22
    ds_read_b32 v6, v22
    v_ashrrev_i32 v22, 31, v34
    v_not_b32 v22, v22
    v_or_b32 v22, 0x80000000, v22
    v_xor_b32 v20, v34, v22
    v_and_b32 v20, s48, v20
    v_mul_f32 v20, 0xbfb8aa3b, v20
    v_exp_f32 v20, v20
    v_mul_u32_u24 v23, {SCR_S}, v17
    v_add_f32 v20, 1.0, v20
    v_rcp_f32 v20, v20
    v_lshl_add_u32 v23, v21, 1, v23
    v_lshlrev_b32 v21, 11, v21
    v_lshl_add_u32 v21, v17, 1, v21
    s_lshl_b32 s41, s39, 4
    v_add_u32 v21, s41, v21               ; out voffset of the routed element
    v_mov_b32 v4, 0
    s_waitcnt lgkmcnt(0)
    v_fma_f32 v20, -v6, v20, v20          ; (1-g)*sigmoid(r)
    """)
    Y = 64; YR = [64 + 4 * k for k in range(7)]
    h3loads = '\n'.join(f"buffer_load_dwordx4 v[{YR[k]}:{YR[k]+3}], v8, s[8:11], {'s44' if k < 4 else 's45'} offen offset:{1024*(k%4)} sc1" for k in range(7))
    def h3_stage(nst):
        a(f"""
        s_cmp_ge_u32 s38, 2
        s_cbranch_scc1 L_H3X
        s_mov_b32 s63, 0
        s_waitcnt vmcnt({nst})
        s_branch L_H3C
        L_H3:
        {h3loads}
        s_waitcnt vmcnt(0)
        L_H3C:
        s_add_u32 s63, s63, 1
        v_xor_b32 v10, v{YR[0]+3}, v49
        """)
        for k in range(1, 7): a(f"v_bitop3_b32 v10, v{YR[k]+3}, v49, v10 bitop3:0xbe")
        a("v_cmp_ne_u32 vcc, 0, v10")
        for k in range(7):
            r = YR[k]
            a(f"v_perm_b32 v{r+3}, v{r+1}, v{r}, s46\nv_perm_b32 v{r+3}, v{r+2}, v{r+3}, s47")
            if k and o['h3pre']: a('\n'.join(f"v_add_f32 v{Y+q}, v{Y+q}, v{r+q}" for q in range(4)))
            elif k: a(f"v_pk_add_f32 v[{Y}:{Y+1}], v[{Y}:{Y+1}], v[{r}:{r+1}]\nv_pk_add_f32 v[{Y+2}:{Y+3}], v[{Y+2}:{Y+3}], v[{r+2}:{r+3}]")
        a(f"""
        s_cbranch_vccz L_H3D
        s_sleep {o['h3sleep']}
        s_cmp_lt_u32 s63, {SPIN}
        s_cbranch_scc1 L_H3
        L_H3D:
        s_nop 0
        """)
        stamp(13)
        if o['stamps']: a("s_mov_b32 s92, s63")
        a(f"""
        v_permlane32_swap_b32 v{Y}, v{Y+1}
        v_permlane32_swap_b32 v{Y+2}, v{Y+3}
        v_add_f32 v{Y}, v{Y}, v{Y+1}
        v_add_f32 v{Y+2}, v{Y+2}, v{Y+3}
        s_mov_b32 s42, 0x00ff00ff
        s_mov_b32 s43, 0x00ff00ff
        v_permlane16_swap_b32 v{Y}, v{Y+2}
        v_add_f32 v{Y}, v{Y}, v{Y+2}
        v_add_f32_dpp v{Y}, v{Y}, v{Y} row_ror:8 row_mask:0xf bank_mask:0xf
        L_H3X:
        """)
    for gi, g in enumerate(groups):
        if o['h3pre'] and g[-1] == 7: h3_stage(g[0] - 1 - o['h3at'])
        AR = 96 + 16 * (gi & 1)
        for k, t in enumerate(g): a(f"v_lshlrev_b32 v{AR+8+k}, {31-t}, v59\nv_and_or_b32 v{AR+8+k}, v{AR+8+k}, s50, v58")
        rd = ''.join(f"ds_read_b64_tr_b16 v[{AR+4*k}:{AR+4*k+1}], v54 offset:{512*t}\nds_read_b64_tr_b16 v[{AR+4*k+2}:{AR+4*k+3}], v54 offset:{512*t + 4*SCR_S}\n" for k, t in enumerate(g))
        lastg = g[-1] == 7
        if lastg: rd += f"ds_read_u16_d16_hi v4, v23 offset:{L_SCR}\n"
        L = a.lab('T'); D = a.lab('TD')
        a(f"""
        s_mov_b32 s62, 0
        {L}:
        ds_read_b32 v10, v12 offset:{sig[g[-1]]}
        {rd if lastg else ''}
        s_add_u32 s62, s62, 1
        s_waitcnt lgkmcnt(0)
        v_cmp_eq_u32 vcc, 0, v10
        s_cbranch_vccz {D}
        s_sleep {1 if lastg else o['esleep']}
        s_cmp_lt_u32 s62, {SPIN * 64}
        s_cbranch_scc1 {L}
        {D}:
        """)
        if not lastg: a(rd + "s_waitcnt lgkmcnt(0)")
        for k, t in enumerate(g):
            a(f"s_mov_b32 s41, {t * 256 * 2048}\nbuffer_store_dwordx4 v[{AR+4*k}:{AR+4*k+3}], v{AR+8+k}, s[12:15], s41 offen")
            if t == o['h3at']: a(h3loads)
    stamp(12)
    if not o['h3pre']: h3_stage(7 - o['h3at'])
    a(f"""
    s_cmp_ge_u32 s38, 2
    s_cbranch_scc1 L_EEND
    v_fma_f32 v4, v{Y}, v20, v4
    v_cvt_pk_bf16_f32 v4, v4, v4
    s_mov_b64 exec, s[42:43]
    buffer_store_short v4, v21, s[12:15], 0 offen
    L_EEND:
    """)
    if o['stamps']:
        a("L_FIN:\ns_mov_b64 exec, -1\ns_waitcnt vmcnt(0) lgkmcnt(0)")
        stamp(15)
        for i in range(16): a(f"v_writelane_b32 v4, s{64+2*i}, {i}")
        a(f"""
        s_mul_i32 s40, s2, 12
        s_add_u32 s40, s40, s3
        s_lshl_b32 s40, s40, 6
        s_add_u32 s40, s40, {WS_ST}
        v_lshlrev_b32 v5, 2, v1
        s_mov_b64 exec, 0xffff
        buffer_store_dword v4, v5, s[8:11], s40 offen
        """)
    a("L_END:\ns_endpgm")
    lines = hazard.fix(a.l, verbose=kw.get('verbose', False))
    k = kernel_text(KNAME, '\n'.join(lines) + '\n', 256, sgpr=102)
    return file_text([f'@launch grid=(256,1,1) block=(512,1,1) lds={LDS_BYTES}'], [k])

if __name__ == '__main__':
    out = sys.argv[1]
    kw = {}
    for x in sys.argv[2:]:
        k, v = x.split('=', 1); kw[k] = eval(v)
    open(out, 'w').write(gen(**kw))
```

```python
def conv3_stream(a, vB, vU, vG, vW, vZ, vOne, sig, UT_PAD, AF, A33, AFIX, RK2, RK3, RC, SL0, NS, smask,
                 maxout=13, lead=6, look=14, epilag=4, reserve=2, lazy_res=None, gate=None, e64=False, wbatch=0, nowrite=False, wpad=False):
    R = lambda r: ('R', r)
    mf = []; started = set()
    def M(dst, A, B):
        mf.append((dst, A, B, dst not in started)); started.add(dst)
    packs = []; tile_end = {}
    for t in range(8):
        if t >= 2:
            s = t - 2
            for q in range(4):
                M(('T', 2, s, q), ('U', s, 8 if q == 3 else 0, t), R(RC + 4 * (0, 1, 2, 1)[q]))
                if q & 1: packs.append((len(mf) - 1, ('P2', s, q >> 1), (('T', 2, s, q - 1), ('T', 2, s, q))))
            M(('acc', t), R(A33), ('U', s, 0, t))
        if t >= 4:
            s = t - 4
            for q in range(2): M(('T', 3, s, q), ('U', s, 8 * q, t), R(RC + 4 * (3 + q)))
            packs.append((len(mf) - 1, ('P3', s), (('T', 3, s, 0), ('T', 3, s, 1))))
            M(('acc', t), R(AFIX), ('U', s, 0, t))
        for be in range(8):
            M(('acc', t), R(AF + 4 * be), ('B', t, be))
            if t < 7: M(('acc', t + 1), R(AF + 32 + 4 * be), ('B', t, be))
        for al in (4, 3, 2):
            if t - al >= 0:
                for h in range(2): M(('acc', t), ('P2', t - al, h), R(RK2 + 8 * (al - 2) + 4 * h))
        for al in range(7, 3, -1):
            if t - al >= 0: M(('acc', t), ('P3', t - al), R(RK3 + 4 * (al - 4)))
        tile_end[t] = max(i for i, m in enumerate(mf) if m[0] == ('acc', t))
    tile_first = {t: min(i for i, m in enumerate(mf) if m[0] == ('acc', t)) for t in range(8)}
    last = {}; firstuse = {}
    for i, m in enumerate(mf):
        for k in (m[1], m[2]):
            if k[0] == 'R': continue
            firstuse.setdefault(k, i); last[k] = i
    late = gate[0] if gate else None
    for t in range(8):
        firstuse[('X', t)] = max(0, tile_first[t] - 4) if t != late else tile_end[t] - 10
        firstuse[('G', t)] = min(len(mf) - 1, tile_end[t] + 1)
    lazy_res = lazy_res or {}
    for n_, r in enumerate(sorted(lazy_res, key=lambda r: min(i for i, m in enumerate(mf) if ('R', r) in (m[1], m[2])))):
        fu = min(i for i, m in enumerate(mf) if ('R', r) in (m[1], m[2]))
        firstuse[('R', r)] = min(fu, look + 3 + 2 * n_) if False else fu
    order = sorted([k for k in firstuse if k[0] in 'UBXGR'], key=lambda k: (firstuse[k], k[0] != 'X'))
    gated = lambda k: gate is not None and k[0] in 'UBXG' and k[1] >= gate[0]
    gate_at = min([firstuse[k] for k in order if gated(k)] + [10 ** 6]) - lead - 1
    gstate = [0]
    free = list(range(NS)); slot = {}; done_at = {}; minfree = [NS]
    def alloc(k):
        assert free, f'out of slots at {k}'
        slot[k] = free.pop(0); minfree[0] = min(minfree[0], len(free))
    reg = lambda k: k[1] if k[0] == 'R' else SL0 + 4 * slot[k]
    nds = [0]; waited = [0]; issue_at = []; cur = [0]
    sfx = '_e64' if e64 else ''
    def wait_for(keys):
        need = max([done_at[k] for k in keys if k in done_at] + [0])
        if need > waited[0]:
            if wbatch:
                old = [n for n, i in issue_at if i <= cur[0] - wbatch]
                need = max([need] + old)
            assert nds[0] - need <= 15
            a(f"s_waitcnt lgkmcnt({nds[0] - need})"); waited[0] = need
            if wpad: a(".p2align 3")
    pend = []
    def load(k, i):
        if k[0] == 'R':
            for txt in lazy_res[k[1]]: a(txt); nds[0] += 1
            done_at[k] = nds[0]; return
        alloc(k); r = reg(k)
        if k[0] == 'B': a(f"ds_read_b128 v[{r}:{r+3}], v{vB} offset:{UT_PAD + 512 * k[1] - 32 * (2 * k[2] + 1)}")
        elif k[0] == 'U': a(f"ds_read_b128 v[{r}:{r+3}], v{vB} offset:{UT_PAD + 512 * k[1] - 32 - 2 * k[2]}")
        elif k[0] == 'G': a(f"ds_read_b128 v[{r}:{r+3}], v{vG} offset:{1024 * k[1]}")
        else: a(f"ds_read_b64 v[{r+2}:{r+3}], v{vU} offset:{512 * k[1]}")
        nds[0] += 1; done_at[k] = nds[0]; issue_at.append((nds[0], i))
        if k[0] == 'X':
            for q in range(4):
                def f(q=q, k=k):
                    wait_for([k]); r = reg(k); src = r + 2 + (q >> 1)
                    a(f"v_and_b32{sfx} v{r+q}, {smask}, v{src}" if q & 1 else f"v_lshlrev_b32{sfx} v{r+q}, 16, v{src}")
                pend.append([i + 6, f, 0, k])
    def add_pack(i, P, T):
        for q in range(4):
            def f(q=q):
                if q == 0: alloc(P)
                a(f"v_cvt_pk_bf16_f32 v{reg(P)+q}, v{reg(T[0])+q}, v{reg(T[1])+q}")
                if q == 3:
                    for x in T: free.append(slot.pop(x))
            pend.append([i + epilag + 1, f, 0, P])
    def add_tile(i, t):
        k = ('acc', t); X = ('X', t); G = ('G', t)
        if t == late:
            for q in range(4):
                def f0(q=q): a(f"v_add_f32 v{reg(k)+q}, v{reg(k)+q}, v{reg(X)+q}")
                pend.append([i + epilag + 1, f0, 0, None])
        for q in range(4):
            def f(q=q):
                wait_for([G])
                a(f"v_fma_f32 v{reg(k)+q}, -v{reg(G)+q}, v{reg(k)+q}, v{reg(X)+q}")
                if q == 3: free.append(slot.pop(X)); free.append(slot.pop(G))
            pend.append([i + epilag + 1, f, 0, None])
        def f1(): r = reg(k); a(f"v_cvt_pk_bf16_f32 v{r}, v{r}, v{r+1}")
        def f2(): r = reg(k); a(f"v_cvt_pk_bf16_f32 v{r+1}, v{r+2}, v{r+3}")
        def f3():
            r = reg(k)
            if not nowrite: a(f"ds_write_b64 v{vW}, v[{r}:{r+1}] offset:{512*t}"); nds[0] += 1
            if t in sig and not nowrite:
                a(f"ds_write_b32 v{vZ}, v{vOne} offset:{sig[t]}"); nds[0] += 1
            free.append(slot.pop(k))
        pend.extend([[i + epilag + 1, f1, 0, None], [i + epilag + 1, f2, 0, None], [i + epilag + 2, f3, 1, None]])
    pk = {i: (P, T) for i, P, T in packs}
    te = {i: t for t, i in tile_end.items()}
    qi = 0; stats = dict(two_ds=0, mixed=0, forced=0)
    a(".p2align 3")
    for i, m in enumerate(mf):
        n = 0; nv = 0; cur[0] = i
        needs = [m[1], m[2]] + ([('X', m[0][1])] if (m[3] and m[0][0] == 'acc' and m[0][1] != late) else [])
        if gate:
            if i == gate_at - 7:
                a(f"ds_read_b32 v{gate[4]}, v{gate[3]} offset:{gate[1]}"); nds[0] += 1; done_at['gate'] = nds[0]; n += 1
            elif i == gate_at - 2:
                wait_for(['gate']); a(f"v_cmp_le_u32 vcc, {gate[2]}, v{gate[4]}"); nv += 1
            elif i == gate_at:
                a(f"""
                s_cbranch_vccnz L_GATE_OK
                s_mov_b32 s62, 0
                L_GATE:
                ds_read_b32 v{gate[4]}, v{gate[3]} offset:{gate[1]}
                s_add_u32 s62, s62, 1
                s_waitcnt lgkmcnt(0)
                v_cmp_le_u32 vcc, {gate[2]}, v{gate[4]}
                s_cbranch_vccnz L_GATE_OK
                s_sleep 1
                s_cmp_lt_u32 s62, {gate[5]}
                s_cbranch_scc1 L_GATE
                L_GATE_OK:
                """); gstate[0] = 1
        def try_loads(urgent_only):
            nonlocal qi, n
            while qi < len(order):
                k = order[qi]
                if gated(k) and not gstate[0]: break
                must = firstuse[k] <= i
                room = nds[0] - waited[0] <= maxout and len(free) > reserve
                urgent = room and ((n == 0 and firstuse[k] <= i + lead) or (i == 0 and firstuse[k] <= lead))
                lazy = room and n == 0 and nv == 0 and firstuse[k] <= i + look
                if not (must or urgent or (lazy and not urgent_only)): break
                load(k, i); qi += 1; n += 1
        try_loads(True)
        forced = [p for p in pend if p[3] is not None and p[3] in needs]
        for p in forced:
            pend.remove(p); p[1](); nv += 1; stats['forced'] += 1
        if n == 0:
            ready = [p for p in pend if p[0] <= i]
            while ready and nv < 2:
                p = ready.pop(0)
                if p[2] and nv: break
                pend.remove(p); p[1]()
                if p[2]: n += 1; break
                nv += 1
        try_loads(False)
        stats['two_ds'] += max(0, n - 1); stats['mixed'] += int(n > 0 and nv > 0)
        wait_for([m[1], m[2]])
        c = None
        if m[3]:
            alloc(m[0])
            c = f"v[{reg(needs[2])}:{reg(needs[2])+3}]" if len(needs) == 3 else '0'
        d = reg(m[0]); ra = reg(m[1]); rb = reg(m[2])
        c = c or f"v[{d}:{d+3}]"
        a(f"v_mfma_f32_16x16x32_bf16 v[{d}:{d+3}], v[{ra}:{ra+3}], v[{rb}:{rb+3}], {c}")
        for k in (m[1], m[2]):
            if k[0] != 'R' and last[k] == i and k in slot: free.append(slot.pop(k))
        if i in pk: add_pack(i, *pk[i])
        if i in te: add_tile(i, te[i])
    left = len(pend)
    for p in list(pend): p[1]()
    return dict(n=len(mf), minfree=minfree[0], nds=nds[0], left=left, gate_at=gate_at, **stats)

if __name__ == '__main__':
    from asmlib import A
    import hazard
    for lead, look in ((6, 14), (5, 12), (4, 20), (8, 24)):
        a = A()
        print(lead, look, conv3_stream(a, 4, 5, 6, 7, 3, 2, {t: 384 + 4 * t for t in range(8)}, 480, 12, 76, 80, 84, 108, 124, 144, 28, 's48', lead=lead, look=look))
        l = hazard.fix(a.l)
        print(len(l), sum('s_waitcnt' in x for x in l), sum('s_nop' in x for x in l))
```

```python
import sys
from asmlib import *
import hazard
from conv3 import conv3_stream

WS_RT, WS_GT, WS_H2, WS_SEL, WS_FL, WS_H3, WS_KX, WS_ST = 0x1000, 0x3000, 0x10000, 0x80000, 0x90000, 0x100000, 0x340000, 0xF00000
H3S = 8192 + 128
F_PUB, F_COL, F_UT, F_H2P, F_TK, F_GX, F_P, F_H, L_TAG, F_KA, F_W2, F_UT2, F_COL2, F_RI, F_V, F_XS = 0, 4, 8, 12, 16, 20, 24, 28, 32, 36, 40, 44, 48, 52, 56, 60
L_GM, L_LIST, L_SEL, L_DUM, L_RK, L_GK, F_T, L_MK = 64, 128, 256, 300, 320, 352, 384, 640
L_SCR = 1024; SCR_S = 8768; SCR_W = 544
TAB_O = 5184
E1A, E0A = 0, 1220
L_KA = L_SCR + 8 * SCR_S; KA_S = 4096
K2X, K2Y, K3A = 0, 1280, 2560
L_UT = L_KA + 8 * KA_S; UT_W = 4672; UT_PAD = 480
L_G = L_UT + 8 * UT_W
L_CB = L_G + 8192
LDS_BYTES = L_CB + 5 * 1024
L_XS = L_SCR + 4 * SCR_S
XS_W = 2080; L_P = L_XS + 8 * XS_W; P_T = 272; P_W = 8 * P_T
L_HS = L_P + 4 * P_W; HS_W = 160
L_PD = L_CB - 4096 - 128; L_W2 = L_KA; W2_R = 1056; W2_G = 8 * W2_R + 128
TAGC = 0x9E3779B9
LOG2E = 0x3FB8AA3B
SPIN = 1 << 15
OOB = 0x1000000

DEF = dict(stamps=False, rownt='', wnt='nt', nD=12, rdelay=12, h2delay=0, h3sleep=4, h3at=7, esleep=2, kdelay=0, wdelay=0,
           aprio=1, bprio=2, pprio=0, oprio=2, nearly=0, two=True, th=10, nA=8, pubw=True, kp=22, kq=4, npre=8, psync=True, r16=False, rpos=3, khint=True, hhint=True, h3f=True, nD0=4, emajor=True, kr=6, pf1=0, pf2=0, vfirst=1, mdelay=0, lazy=True, h3pre=False, lead=6, look=14, epilag=5, wbatch=6, slowc=3, groups=((0, 1), (2, 3), (4,), (5,), (6,), (7,)))

def gen(**kw):
    o = dict(DEF); o.update(kw)
    a = A()
    vZ, vOne = 3, 2
    groups = o['groups']
    sig = {g[-1]: F_T + 32 * g[-1] for g in groups}
    RED = ('quad_perm:[1,0,3,2] row_mask:0xf', 'quad_perm:[2,3,0,1] row_mask:0xf', 'row_half_mirror row_mask:0xf', 'row_mirror row_mask:0xf',
           'row_bcast:15 row_mask:0xa', 'row_bcast:31 row_mask:0xc')
    def stamp(i):
        if o['stamps']: a(f"s_memrealtime s[{64+2*i}:{65+2*i}]\ns_waitcnt lgkmcnt(0)")
    def cstamp(i):
        if o['stamps']: a(f"s_memtime s[{64+2*i}:{65+2*i}]\ns_waitcnt lgkmcnt(0)")
    def finish():
        a("s_branch L_FIN" if o['stamps'] else "s_endpgm")
    def signal(f):
        a(f"s_mov_b64 exec, 1\nds_add_u32 v{vZ}, v{vOne} offset:{f}\ns_mov_b64 exec, -1")
    def lwait(f, n, vt, extra='', sleep=1, sc='s62'):
        L = a.lab('W'); D = a.lab('WD')
        a(f"""
        s_mov_b32 {sc}, 0
        {L}:
        ds_read_b32 v{vt}, v{vZ} offset:{f}
        {extra}
        s_add_u32 {sc}, {sc}, 1
        s_waitcnt lgkmcnt(0)
        v_cmp_le_u32 vcc, {n}, v{vt}
        s_cbranch_vccnz {D}
        """)
        if sleep: a(f"s_sleep {sleep}")
        a(f"s_cmp_lt_u32 {sc}, {SPIN * 64}\ns_cbranch_scc1 {L}\n{D}:")
    def selwait(vd, va, sleep, extra='', vd2=None):
        L = a.lab('SW'); D = a.lab('SD')
        a(f"s_mov_b32 s62, 0\n{L}:\nds_read_b32 v{vd}, v{va} offset:{L_SEL}")
        if vd2: a(f"ds_read_b32 v{vd2}, v{va} offset:{L_SEL + 16}")
        a(f"s_add_u32 s62, s62, 1\ns_waitcnt lgkmcnt(0)")
        if vd2: a(f"v_min_u32 v10, v{vd}, v{vd2}\nv_cmp_eq_u32 vcc, 0, v10")
        else: a(f"v_cmp_eq_u32 vcc, 0, v{vd}")
        a(f"{extra}\ns_cbranch_vccz {D}\n{'s_sleep %d' % sleep if sleep else ''}\ns_cmp_lt_u32 s62, {SPIN * 64}\ns_cbranch_scc1 {L}\n{D}:")
    def spoll(loads, tags, stag, sleep=0):
        L = a.lab('SP'); D = a.lab('SPD'); N = a.lab('SPN')
        a(f"s_mov_b32 s62, 0\n{L}:\n{loads}\ns_add_u32 s62, s62, 1\ns_waitcnt lgkmcnt(0)")
        for t in tags[:-1]: a(f"s_cmp_lg_u32 s{t}, {stag}\ns_cbranch_scc1 {N}")
        a(f"s_cmp_eq_u32 s{tags[-1]}, {stag}\ns_cbranch_scc1 {D}\n{N}:")
        if sleep: a(f"s_sleep {sleep}")
        a(f"s_cmp_lt_u32 s62, {SPIN * 4}\ns_cbranch_scc1 {L}\n{D}:")
    def gpoll(loads, tags, vt, sleep, cnt='s62', mid='', between=None, nb=0, skipfirst=False):
        L = a.lab('P'); D = a.lab('PD'); C = a.lab('PC')
        a(f"s_mov_b32 {cnt}, 0")
        if between is not None:
            if not skipfirst: a(loads)
            between(); a(f"s_waitcnt vmcnt({nb})\ns_branch {C}")
        a(f"{L}:\n{loads}\ns_waitcnt vmcnt(0)\n{C}:\ns_add_u32 {cnt}, {cnt}, 1")
        a(f"v_xor_b32 v{vt}, {tags[0][1]}, v{tags[0][0]}")
        for t, e in tags[1:]: a(f"v_bitop3_b32 v{vt}, v{t}, {e}, v{vt} bitop3:0xbe")
        a(f"v_cmp_ne_u32 vcc, 0, v{vt}\n{mid}\ns_cbranch_vccz {D}")
        if sleep: a(f"s_sleep {sleep}")
        a(f"s_cmp_lt_u32 {cnt}, {SPIN}\ns_cbranch_scc1 {L}\n{D}:")
    K = list(range(200, 208))
    def topk_prep():
        a(f"""
        s_lshl_b32 s41, s38, 11
        v_add_u32 v239, s41, v8
        v_lshrrev_b32 v240, 2, v239
        v_or_b32 v240, 0x8000, v240
        """)
        for j in range(1, 8): a(f"v_add_u32 v{240+j}, {(j & 3) + 256 * (j >> 2)}, v240")
        a(f"""
        s_lshl_b32 s41, s38, 4
        v_lshl_add_u32 v220, v12, 2, s41
        v_and_b32 v221, 15, v1
        v_lshlrev_b32 v221, 2, v221
        v_lshlrev_b32 v222, 4, v12
        s_lshl_b32 s26, s38, 5
        s_add_u32 s27, s26, 28
        v_and_b32 v223, 7, v1
        v_lshl_add_u32 v223, v223, 2, s26
        v_lshrrev_b32 v224, 3, v1
        v_lshlrev_b32 v224, 4, v224
        v_mov_b32 v225, {L_DUM - L_LIST}
        v_mov_b32 v226, {L_DUM - L_SEL}
        s_mov_b32 s25, {WS_RT}
        """)
    topk_keys = ''.join(f"v_lshl_or_b32 v{K[2*j]}, v{192+2*j}, 16, v{240+2*j}\nv_and_or_b32 v{K[2*j+1]}, v{192+2*j}, s21, v{241+2*j}\n" for j in range(4))
    rt_loads = "buffer_load_dwordx4 v[192:195], v239, s[8:11], s25 offen sc1\nbuffer_load_dwordx4 v[196:199], v239, s[8:11], s25 offen offset:1024 sc1\n"
    def topk(X):
        t3 = [f"v_max3_u32 v212, v{K[0]}, v{K[1]}, v{K[2]}", f"v_med3_u32 v213, v{K[0]}, v{K[1]}, v{K[2]}", f"v_min3_u32 v214, v{K[0]}, v{K[1]}, v{K[2]}"]
        for j in range(3, 8):
            t3 += [f"v_med3_u32 v214, v213, v214, v{K[j]}", f"v_med3_u32 v213, v212, v213, v{K[j]}", f"v_max_u32 v212, v212, v{K[j]}"]
        a(t3.pop(0))
        a(f"v_max3_u32 v211, v{K[3]}, v{K[4]}, v{K[5]}\nv_max3_u32 v210, v212, v{K[6]}, v{K[7]}\nv_max_u32 v210, v210, v211")
        for ctl in RED[:4]:
            a(t3.pop(0)); a(t3.pop(0))
            a(f"v_max_u32_dpp v210, v210, v210 {ctl} bank_mask:0xf")
        a(f"ds_write_b32 v220, v210 offset:{L_GM}\nds_read_b32 v215, v221 offset:{L_GM}\nds_read_b128 v[216:219], v222 offset:{L_GM}")
        while t3: a(t3.pop(0))
        cnt4 = f"""
        v_cmp_gt_u32 s[28:29], v216, v215
        v_cmp_gt_u32 s[30:31], v217, v215
        v_cmp_gt_u32 s[32:33], v218, v215
        v_cmp_gt_u32 s[34:35], v219, v215
        v_addc_co_u32 v209, s[36:37], 0, v{vZ}, s[28:29]
        v_addc_co_u32 v209, s[36:37], 0, v209, s[30:31]
        v_addc_co_u32 v209, s[36:37], 0, v209, s[32:33]
        v_addc_co_u32 v209, s[36:37], 0, v209, s[34:35]
        """
        fold = """
        v_mov_b32 v216, v209
        v_permlane32_swap_b32 v209, v216
        v_add_u32 v209, v209, v216
        v_mov_b32 v216, v209
        v_permlane16_swap_b32 v209, v216
        v_add_u32 v209, v209, v216
        """
        a(f"""
        s_mov_b32 s62, 0
        L_GMW{X}:
        s_waitcnt lgkmcnt(0)
        v_cmp_eq_u32 vcc, 0, v215
        {cnt4}
        s_cbranch_vccz L_GMD{X}
        ds_read_b32 v215, v221 offset:{L_GM}
        ds_read_b128 v[216:219], v222 offset:{L_GM}
        s_add_u32 s62, s62, 1
        s_cmp_lt_u32 s62, {SPIN*64}
        s_cbranch_scc1 L_GMW{X}
        s_waitcnt lgkmcnt(0)
        L_GMD{X}:
        {fold}
        v_cmp_eq_u32 vcc, 7, v209
        s_ff1_i32_b64 s41, vcc
        s_and_b32 s41, s41, 63
        v_readlane_b32 s41, v215, s41
        v_cmp_le_u32 s[28:29], s41, v212
        v_cmp_le_u32 s[30:31], s41, v213
        v_cmp_le_u32 vcc, s41, v214
        v_mbcnt_lo_u32_b32 v216, s28, 0
        v_mbcnt_lo_u32_b32 v217, s30, 0
        v_mbcnt_hi_u32_b32 v216, s29, v216
        v_mbcnt_hi_u32_b32 v217, s31, v217
        v_min_u32 v216, 7, v216
        v_min_u32 v217, 7, v217
        v_lshl_add_u32 v216, v216, 2, s26
        v_lshlrev_b32 v217, 2, v217
        v_sub_u32 v217, s27, v217
        v_cndmask_b32 v216, v225, v216, s[28:29]
        v_cndmask_b32 v217, v225, v217, s[30:31]
        ds_write_b32 v216, v212 offset:{L_LIST}
        ds_write_b32 v217, v213 offset:{L_LIST}
        s_cbranch_vccnz L_TKF{X}
        s_bcnt1_i32_b64 s28, s[28:29]
        s_bcnt1_i32_b64 s30, s[30:31]
        s_add_u32 s28, s28, s30
        s_cmp_le_u32 s28, 8
        s_cbranch_scc1 L_TKP{X}
        L_TKF{X}:
        s_mov_b32 s41, 0
        L_TKFL{X}:
        v_max3_u32 v210, v{K[0]}, v{K[1]}, v{K[2]}
        v_max3_u32 v210, v210, v{K[3]}, v{K[4]}
        v_max3_u32 v210, v210, v{K[5]}, v{K[6]}
        v_max_u32 v210, v210, v{K[7]}
        """)
        for ctl in RED: a(f"v_max_u32_dpp v210, v210, v210 {ctl} bank_mask:0xf")
        a(f"v_readlane_b32 s28, v210, 63\ns_mov_b32 m0, s41\ns_nop 0\nv_writelane_b32 v209, s28, m0")
        for j in range(8): a(f"v_cmp_ne_u32 vcc, s28, v{K[j]}\nv_cndmask_b32 v{K[j]}, 0, v{K[j]}, vcc")
        a(f"""
        s_add_u32 s41, s41, 1
        s_cmp_lt_u32 s41, 8
        s_cbranch_scc1 L_TKFL{X}
        s_mov_b64 exec, 0xff
        ds_write_b32 v223, v209 offset:{L_LIST}
        s_mov_b64 exec, -1
        L_TKP{X}:
        s_mov_b64 exec, 1
        ds_add_u32 v{vZ}, v{vOne} offset:{F_TK}
        s_mov_b64 exec, -1
        s_mov_b32 s62, 0
        L_TKW{X}:
        ds_read_b32 v208, v{vZ} offset:{F_TK}
        ds_read_b32 v215, v223 offset:{L_LIST}
        ds_read_b128 v[216:219], v224 offset:{L_LIST}
        s_add_u32 s62, s62, 1
        s_waitcnt lgkmcnt(0)
        v_cmp_le_u32 vcc, 4, v208
        {cnt4}
        s_cbranch_vccnz L_TKD{X}
        s_cmp_lt_u32 s62, {SPIN*64}
        s_cbranch_scc1 L_TKW{X}
        L_TKD{X}:
        s_nop 0
        v_add_u32_dpp v209, v209, v209 row_ror:8 row_mask:0xf bank_mask:0xf
        {fold}
        v_cmp_gt_u32 vcc, 8, v209
        v_lshlrev_b32 v209, 2, v209
        v_cndmask_b32 v209, v226, v209, vcc
        ds_write_b32 v209, v215 offset:{L_SEL}
        """)

    TG = 253
    def rows_issue(RW):
        a(f"""
        s_cmp_lt_u32 s38, 2
        s_cselect_b32 s28, s28, s36
        s_cselect_b32 s29, s29, s37
        s_lshl_b32 s42, s38, 10
        s_add_u32 m0, s42, {L_G}
        s_and_b32 s42, s42, 1024
        v_add_u32 v9, s42, v8
        s_barrier
        buffer_load_dword v{TG}, off, s[8:11], 0 sc1
        global_load_lds_dwordx4 v9, s[28:29]
        buffer_load_dwordx4 v[{RW}:{RW+3}], v8, s[4:7], s41 offen {o['rownt']}
        buffer_load_dwordx4 v[{RW+4}:{RW+7}], v8, s[4:7], s41 offen offset:1024 {o['rownt']}
        buffer_load_dwordx4 v[{RW+8}:{RW+11}], v8, s[4:7], s41 offen offset:2048 {o['rownt']}
        buffer_load_dwordx4 v[{RW+12}:{RW+15}], v8, s[4:7], s41 offen offset:3072 {o['rownt']}
        """)
        signal(F_RI)
    def rows_dots(RW, DA, nwait, X):
        a(f"""
        v_bfe_u32 v{DA+4}, v1, 4, 1
        v_lshrrev_b32 v{DA+5}, 5, v1
        v_lshlrev_b32 v{DA+4}, 1, v{DA+4}
        v_lshl_add_u32 v{DA+4}, v{DA+5}, 4, v{DA+4}
        s_lshl_b32 s41, s38, 2
        v_add_u32 v{DA+4}, s41, v{DA+4}
        v_lshlrev_b32 v{DA+5}, 2, v1
        v_lshrrev_b32 v{DA+6}, 2, v1
        v_mul_u32_u24 v{DA+6}, {WS_GT - WS_RT - 32}, v{DA+6}
        v_lshl_add_u32 v{DA+6}, v1, 3, v{DA+6}
        s_lshl_b32 s27, s2, 5
        s_add_u32 s27, s27, {WS_RT}
        v_add_u32 v{DA+7}, {L_G}, v8
        s_waitcnt vmcnt({nwait + 4})
        """)
        signal(F_V)
        lwait(F_V, 4, 10, extra='\n'.join(f"ds_read_b128 v[{RW+16+4*k}:{RW+19+4*k}], v{DA+7} offset:{1024*k}" for k in range(4)), sleep=1)
        a(f"v_cmp_gt_u32 vcc, 32, v1\ns_waitcnt vmcnt({nwait})")
        stamp(1)
        for k in range(8):
            for q, (rw, wv) in enumerate(((0, 16), (8, 16), (0, 24), (8, 24))):
                a(f"v_dot2_f32_bf16 v{DA+q}, v{RW+rw+k}, v{RW+wv+k}, {'0' if k == 0 else 'v%d' % (DA+q)}")
        a(f"""
        v_add_u32 v{TG}, {TAGC}, v{TG}
        v_permlane32_swap_b32 v{DA}, v{DA+2}
        v_permlane32_swap_b32 v{DA+1}, v{DA+3}
        v_add_f32 v{DA}, v{DA}, v{DA+2}
        v_add_f32 v{DA+1}, v{DA+1}, v{DA+3}
        ds_write_b32 v{vZ}, v{TG} offset:{L_TAG}
        v_permlane16_swap_b32 v{DA}, v{DA+1}
        v_add_f32 v{DA}, v{DA}, v{DA+1}
        """)
        for ctl in RED[:4]: a(f"v_add_f32_dpp v{DA}, v{DA}, v{DA} {ctl} bank_mask:0xf")
        a(f"""
        v_cvt_pk_bf16_f32 v{DA}, v{DA}, v{DA}
        v_and_b32 v{DA+1}, 0xffff0000, v{DA}
        v_mul_f32 v{DA+1}, 0xbfb8aa3b, v{DA+1}
        v_exp_f32 v{DA+1}, v{DA+1}
        v_ashrrev_i32 v{DA+2}, 31, v{DA}
        v_add_f32 v{DA+1}, 1.0, v{DA+1}
        v_rcp_f32 v{DA+1}, v{DA+1}
        v_or_b32 v{DA+2}, 0x8000, v{DA+2}
        v_xor_b32 v{DA}, v{DA}, v{DA+2}
        v_cvt_pk_bf16_f32 v{DA+1}, v{DA+1}, 0
        v_cndmask_b32 v{DA}, v{DA+1}, v{DA}, vcc
        ds_write_b16 v{DA+4}, v{DA} offset:{L_RK}
        s_mov_b64 exec, 1
        ds_add_rtn_u32 v10, v{vZ}, v{vOne} offset:{F_PUB}
        s_mov_b64 exec, 0xff
        ds_read_b32 v{TG-1}, v{DA+5} offset:{L_RK}
        s_waitcnt lgkmcnt(0)
        v_readfirstlane_b32 s41, v10
        s_cmp_lg_u32 s41, 3
        s_cbranch_scc1 L_NP{X}
        buffer_store_dwordx2 v[{TG-1}:{TG}], v{DA+6}, s[8:11], s27 offen sc1
        s_mov_b64 exec, 1
        ds_add_u32 v{vZ}, v{vOne} offset:{F_PUB}
        L_NP{X}:
        s_mov_b64 exec, -1
        """)
    def rows_issue16(RW):
        a(f"""
        s_cmp_lt_u32 s38, 2
        s_cselect_b32 s28, s28, s36
        s_cselect_b32 s29, s29, s37
        s_lshl_b32 s42, s38, 10
        s_add_u32 m0, s42, {L_G}
        s_and_b32 s42, s42, 1024
        v_add_u32 v9, s42, v8
        s_lshl_b32 s41, s39, 15
        s_lshl_b32 s42, s38, 13
        s_add_u32 s41, s41, s42
        s_add_u32 s42, s41, 4096
        s_barrier
        buffer_load_dword v{TG}, off, s[8:11], 0 sc1
        s_cmp_lg_u32 s47, 0
        s_cbranch_scc1 L_M0
        global_load_lds_dwordx4 v9, s[28:29]
        """)
        for i in range(8):
            a(f"buffer_load_dwordx4 v[{RW+4*i}:{RW+4*i+3}], v8, s[4:7], {'s41' if i < 4 else 's42'} offen offset:{1024*(i%4)} {o['rownt']}")
        signal(F_RI)
    def rows_dots16(RW, VV, DA):
        a(f"""
        s_lshl_b32 s41, s38, 3
        v_lshl_add_u32 v{DA+8}, v18, 1, s41
        v_lshlrev_b32 v{DA+9}, 2, v1
        v_lshrrev_b32 v{DA+10}, 3, v1
        v_mul_u32_u24 v{DA+10}, {WS_GT - WS_RT - 64}, v{DA+10}
        v_lshl_add_u32 v{DA+10}, v1, 3, v{DA+10}
        s_lshl_b32 s27, s39, 6
        s_add_u32 s27, s27, {WS_RT}
        v_add_u32 v{DA+11}, {L_G}, v8
        s_waitcnt vmcnt(9)
        """)
        signal(F_V)
        lwait(F_V, 4, 10, extra='\n'.join(f"ds_read_b128 v[{VV+4*k}:{VV+4*k+3}], v{DA+11} offset:{1024*k}" for k in range(4)), sleep=1)
        for half in range(2):
            a(f"s_waitcnt vmcnt({5 - 4 * half})")
            if half: stamp(1)
            for k in range(8):
                for q in (2 * half, 2 * half + 1, 4 + 2 * half, 5 + 2 * half):
                    a(f"v_dot2_f32_bf16 v{DA+q}, v{RW+8*(q&3)+k}, v{VV+8*(q>>2)+k}, {'0' if k == 0 else 'v%d' % (DA+q)}")
        a(f"v_add_u32 v{TG}, {TAGC}, v{TG}")
        for x, y in ((0, 2), (1, 3), (4, 6), (5, 7)): a(f"v_permlane32_swap_b32 v{DA+x}, v{DA+y}")
        for x, y in ((0, 2), (1, 3), (4, 6), (5, 7)): a(f"v_add_f32 v{DA+x}, v{DA+x}, v{DA+y}")
        a(f"ds_write_b32 v{vZ}, v{TG} offset:{L_TAG}\nv_permlane16_swap_b32 v{DA}, v{DA+1}\nv_permlane16_swap_b32 v{DA+4}, v{DA+5}\nv_add_f32 v{DA}, v{DA}, v{DA+1}\nv_add_f32 v{DA+4}, v{DA+4}, v{DA+5}")
        for ctl in RED[:4]:
            for q in (4, 0): a(f"v_add_f32_dpp v{DA+q}, v{DA+q}, v{DA+q} {ctl} bank_mask:0xf")
        a(f"""
        v_cvt_pk_bf16_f32 v10, v{DA}, v{DA+4}
        v_and_b32 v{DA+4}, s48, v10
        v_mul_f32 v{DA+4}, 0xbfb8aa3b, v{DA+4}
        v_exp_f32 v{DA+4}, v{DA+4}
        v_bfe_i32 v{DA}, v10, 15, 1
        v_add_f32 v{DA+4}, 1.0, v{DA+4}
        v_rcp_f32 v{DA+4}, v{DA+4}
        v_or_b32 v{DA}, 0x8000, v{DA}
        v_xor_b32 v10, v10, v{DA}
        v_cvt_pk_bf16_f32 v{DA+4}, v{DA+4}, v{DA+4}
        ds_write_b16 v{DA+8}, v10 offset:{L_RK}
        ds_write_b16 v{DA+8}, v{DA+4} offset:{L_GK}
        s_mov_b64 exec, 1
        ds_add_rtn_u32 v10, v{vZ}, v{vOne} offset:{F_PUB}
        s_mov_b64 exec, 0xffff
        ds_read_b32 v{TG-1}, v{DA+9} offset:{L_RK}
        s_waitcnt lgkmcnt(0)
        v_readfirstlane_b32 s41, v10
        s_cmp_lg_u32 s41, 3
        s_cbranch_scc1 L_NP
        buffer_store_dwordx2 v[{TG-1}:{TG}], v{DA+10}, s[8:11], s27 offen sc1
        s_mov_b64 exec, 1
        ds_add_u32 v{vZ}, v{vOne} offset:{F_PUB}
        L_NP:
        s_mov_b64 exec, -1
        """)
    nt = o['rownt']
    a(f"""
    s_cmp_ge_u32 s2, 256
    s_cbranch_scc1 L_END
    s_getpc_b64 s[48:49]
    L_PC:
    s_lshr_b32 s40, s2, 3
    s_lshl_b32 s41, s40, 10
    v_lshl_add_u32 v9, v0, 1, s41
    v_min_u32 v9, L_END-L_PC, v9
    global_load_ushort v255, v9, s[48:49]
    s_load_dwordx8 s[16:23], s[0:1], 8
    s_load_dwordx4 s[24:27], s[0:1], 40
    s_load_dwordx2 s[4:5], s[0:1], 0
    s_load_dwordx2 s[8:9], s[0:1], 120
    s_load_dwordx8 s[28:35], s[0:1], 64
    s_load_dwordx2 s[36:37], s[0:1], 96
    s_load_dwordx2 s[12:13], s[0:1], 104
    v_readfirstlane_b32 s3, v0
    v_and_b32 v1, 63, v0
    v_mov_b32 v{vZ}, 0
    v_mov_b32 v{vOne}, 1
    v_lshlrev_b32 v8, 4, v1
    s_mov_b32 s6, 0x400000
    s_mov_b32 s7, 0x20000
    s_mov_b32 s10, {OOB}
    s_mov_b32 s11, 0x20000
    s_mov_b32 s14, 0x400000
    s_mov_b32 s15, 0x20000
    s_lshr_b32 s3, s3, 6
    s_and_b32 s41, s2, 7
    s_lshr_b32 s40, s2, 4
    """)
    if o['stamps']:
        for i in range(16): a(f"s_mov_b64 s[{64+2*i}:{65+2*i}], 0")
        stamp(0)
    a(f"""
    s_bfe_u32 s47, s2, 0x10003
    s_and_b32 s38, s3, 3
    s_cmp_ge_u32 s3, 4
    s_cbranch_scc1 L_N0
    s_xor_b32 s41, s41, s47
    s_lshl_b32 s39, s41, 4
    s_add_u32 s39, s39, s40
    s_lshl_b32 s41, s39, 1
    s_add_u32 s41, s41, s47
    s_lshl_b32 s41, s41, 2
    s_add_u32 s41, s41, s3                ; d
    s_lshl_b32 s42, s41, 8
    v_lshl_add_u32 v4, v1, 2, s42
    s_lshl_b32 s42, s41, 1
    v_mov_b32 v5, s42
    v_mov_b32 v12, 0
    v_mov_b32 v13, 0
    s_waitcnt lgkmcnt(0)
    global_load_short_d16_hi v12, v5, s[24:25]
    global_load_dword v8, v4, s[16:17]
    global_load_dword v9, v4, s[18:19]
    global_load_dword v10, v4, s[20:21]
    global_load_dword v11, v4, s[22:23]
    global_load_short_d16_hi v13, v5, s[26:27]
    s_barrier
    s_setprio {o['aprio']}
    s_branch L_S
    L_N0:
    v_lshlrev_b32 v4, 2, v0
    v_and_b32 v4, 1023, v4
    ds_write_b32 v4, v{vZ}
    s_lshl_b32 s39, s41, 4
    s_add_u32 s39, s39, s40
    s_setprio {o['bprio']}
    s_lshl_b32 s41, s2, 14
    s_lshl_b32 s42, s38, 12
    s_add_u32 s41, s41, s42
    s_waitcnt lgkmcnt(0)
    """)
    RW = 208; UR = 176; UO = 208
    if o['r16']: rows_issue16(RW)
    else:
        rows_issue(RW); a("s_cmp_lg_u32 s47, 0\ns_cbranch_scc1 L_M0")
    a(f"""
    v_and_b32 v168, 255, v0
    v_lshlrev_b32 v169, 14, v168
    s_lshl_b32 s43, s39, 4
    v_add_u32 v169, s43, v169
    s_movk_i32 s16, 0x1000
    s_movk_i32 s17, 0x2000
    s_movk_i32 s18, 0x3000
    s_and_b32 s19, s40, 7
    """)
    lwait(F_RI, 4, 10, sleep=1)
    if o['mdelay']: a(f"s_sleep {o['mdelay']}")
    def uload(j):
        so = ('0', 's16', 's17', 's18')[j >> 1]
        a(f"buffer_load_dwordx4 v[{UR+4*j}:{UR+4*j+3}], v169, s[4:7], {so} offen offset:{2048*(j&1)}")
    for j in range(8):
        L = a.lab('U'); a(f"s_cmp_lg_u32 s19, {j}\ns_cbranch_scc1 {L}"); uload(j); a(f"{L}:")
    a("s_branch L_S")

    wnt = o['wnt']; sc = o['slowc']
    decode = f"""
    s_and_b32 s41, s2, 7
    s_lshl_b32 s39, s40, 3
    s_add_u32 s39, s39, s41
    s_lshr_b32 s41, s39, 1                ; p
    s_mul_i32 s42, s41, 37
    s_lshr_b32 s42, s42, 8                ; p / 7
    s_mul_i32 s43, s42, 7
    s_sub_u32 s43, s41, s43               ; p % 7
    s_lshl_b32 s51, s42, 3
    s_add_u32 s51, s51, s43
    s_cmp_ge_u32 s43, {sc}
    s_addc_u32 s51, s51, 0
    s_sub_u32 s41, s41, 49
    s_lshr_b32 s42, s41, 1
    s_lshl_b32 s42, s42, 3
    s_add_u32 s42, s42, {sc}
    s_and_b32 s41, s41, 1
    s_cmp_ge_u32 s39, 98
    s_cselect_b32 s51, s42, s51           ; strip c
    s_cselect_b32 s50, s41, 0             ; K half
    s_cselect_b32 s63, 7, 8
    """
    BC, FB, FP, XO = 56, 88, 24, 216
    ffn2_prep = f"""
    v_and_b32 v15, 7, v1
    v_lshrrev_b32 v12, 4, v1
    v_mul_u32_u24 v14, {W2_G}, v12
    v_bfe_u32 v10, v1, 2, 2
    v_mul_u32_u24 v10, {W2_R}, v10
    v_add_u32 v14, v14, v10
    v_and_b32 v10, 3, v1
    v_lshl_add_u32 v14, v10, 3, v14
    s_lshl_b32 s41, s3, 7
    s_add_u32 s41, s41, {L_W2}
    v_add_u32 v14, s41, v14
    v_mul_u32_u24 v23, {HS_W}, v15
    v_lshl_add_u32 v23, v12, 4, v23
    v_add_u32 v23, {L_HS}, v23
    v_mul_u32_u24 v19, {H3S}, v12
    v_lshl_add_u32 v19, v15, 4, v19       ; H3 voffset
    s_and_b32 s60, s39, 1
    s_lshl_b32 s60, s60, 3
    s_add_u32 s60, s60, s3
    s_mul_i32 s61, s60, {16*H3S}
    s_lshl_b32 s41, s51, 7
    s_add_u32 s61, s61, s41
    s_add_u32 s61, s61, {WS_H3}
    s_lshl_b32 s60, s60, 12               ; flags: [consumer][strip/14][strip%14]
    s_mul_i32 s41, s51, 147
    s_lshr_b32 s41, s41, 11
    s_mul_i32 s41, s41, 72
    s_add_u32 s60, s60, s41
    s_lshl_b32 s41, s51, 2
    s_add_u32 s60, s60, s41
    s_add_u32 s60, s60, {WS_FL}
    v_lshlrev_b32 v11, 9, v1
    s_lshl_b32 s49, s51, 13
    s_add_u32 s49, s49, {WS_H2}
    v_and_b32 v18, 255, v0
    v_lshrrev_b32 v20, 5, v18
    v_and_b32 v21, 31, v18
    v_lshlrev_b32 v18, 3, v18             ; H2 voffset
    s_mov_b32 s42, 0x00ff00ff
    s_mov_b32 s43, 0x00ff00ff
    s_mov_b32 s18, 0x07060501
    s_mov_b32 s19, 0x07060502
    s_mov_b32 s20, 0x07060503
    """
    def w2_operands():
        lwait(F_W2, 4, 10, sleep=o.get('wsleep', 0))
        for t in range(4):
            for s_ in range(2):
                a(f"ds_read_b64_tr_b16 v[{BC+16*s_+4*t}:{BC+16*s_+4*t+1}], v14 offset:{4*s_*W2_G + 32*t}\nds_read_b64_tr_b16 v[{BC+16*s_+4*t+2}:{BC+16*s_+4*t+3}], v14 offset:{4*s_*W2_G + 4*W2_R + 32*t}")
        for i in range(4): a(f"v_mov_b32 v{FP+4*i+3}, v{TG}")

    RB = [56, 88, 120, 152]; SP = 24; ACC = 184
    a(f"""
    L_M0:
    {decode}
    s_cselect_b32 s46, 0, 7340032
    s_mov_b32 s53, {57*7168}
    s_cselect_b32 s53, {(-7*7168) & 0xffffffff}, s53
    s_mov_b32 s47, 0x20000
    s_mov_b32 s58, 7340032
    s_mov_b32 s59, 0x20000
    s_lshl_b32 s41, s38, s63
    s_lshl_b32 s42, s50, 9
    s_add_u32 s61, s41, s42
    s_mul_i32 s52, s61, 7168
    s_lshl_b32 s41, s51, 7
    s_add_u32 s52, s52, s41               ; W1 soffset
    v_and_b32 v15, 7, v1
    v_lshrrev_b32 v16, 3, v1              ; rr
    v_mul_u32_u24 v13, {8*7168}, v16
    v_lshl_add_u32 v13, v15, 4, v13       ; W1 voffset
    s_bitcmp1_b32 s39, 0
    s_cselect_b32 s56, s32, s30
    s_cselect_b32 s57, s33, s31
    s_mov_b32 s44, s56
    s_mov_b32 s45, s57
    s_cmp_ge_u32 s39, 126
    s_cselect_b32 s58, 0, s58
    """)
    if not o['r16']: lwait(F_RI, 4, 10, sleep=1)
    if o['wdelay']: a(f"s_sleep {o['wdelay']}")
    vm = [('rows',)]; known = [0]; n1 = [0]
    def w1(upto, th):
        while n1[0] < min(upto, 32):
            k = n1[0]; r = RB[k >> 3] + 4 * (k & 7)
            if len(vm) - known[0] >= th:
                a(f"s_waitcnt vmcnt({th - 1})"); known[0] = len(vm) - (th - 1)
            a(f"buffer_load_dwordx4 v[{r}:{r+3}], v13, {'s[44:47]' if k & 8 else 's[56:59]'}, s52 offen {wnt}\ns_add_u32 s52, s52, {7168 if (k & 7) != 7 else ('s53' if k == 15 else 57*7168)}")
            vm.append(('w', k)); n1[0] += 1
    OP = [SP] + RB[:3]; pd = [0]
    def vwait(tag):
        if vm.index(tag) >= known[0]:
            a(f"s_waitcnt vmcnt({len(vm) - 1 - vm.index(tag)})"); known[0] = vm.index(tag) + 1
    def perm_pair():
        s_, p = pd[0] >> 2, pd[0] & 3
        vwait(('w', 2 * pd[0] + 1))
        for e in range(8): a(f"v_perm_b32 v{OP[s_]+4*e+p}, v{RB[s_]+8*p+4+(e>>1)}, v{RB[s_]+8*p+(e>>1)}, s{54+(e&1)}")
        pd[0] += 1
    w1(o['nA'], 63)
    if o['r16']:
        a(f"s_waitcnt vmcnt({o['nA']})\nv_add_u32 v{TG}, {TAGC}, v{TG}\nds_write_b32 v{vZ}, v{TG} offset:{L_TAG}")
        signal(F_PUB)
    else: rows_dots(RW, 240, o['nA'], 'M')
    known[0] = 1
    a("s_cmp_ge_u32 s39, 126\ns_cbranch_scc1 L_AG\ns_setprio 0")
    if o['pubw'] and not o['r16']: lwait(F_PUB, 5, 10, sleep=1)
    stamp(7)
    w1(32, o['th'])
    signal(F_KA)
    stamp(8)
    a(f"""
    s_lshl_b32 s23, s61, 1
    s_add_u32 s23, s23, {L_XS}
    s_lshl_b32 s24, 1, s63
    s_mov_b32 s54, 0x05040100
    s_mov_b32 s55, 0x07060302
    """)
    a(ffn2_prep)
    a(f"""
    v_mul_u32_u24 v10, {XS_W}, v15
    v_lshl_add_u32 v10, v16, 4, v10
    v_add_u32 v248, s23, v10
    v_add_u32 v250, s24, v248
    s_sub_u32 s24, s24, 128
    v_add_u32 v249, s24, v248
    v_add_u32 v251, s24, v250
    v_mul_u32_u24 v17, {P_T}, v15
    v_lshl_add_u32 v17, v12, 4, v17
    s_mul_i32 s41, s38, {P_W}
    s_add_u32 s41, s41, {L_P}
    v_add_u32 v17, s41, v17
    v_and_b32 v10, 8, v1
    v_mul_u32_u24 v10, {(L_PD - L_P) // 8}, v10
    v_add_u32 v17, v17, v10
    v_mul_u32_u24 v22, {HS_W}, v20
    v_lshl_add_u32 v22, v21, 2, v22
    v_add_u32 v22, {L_HS}, v22
    s_add_u32 s22, s49, 4096
    s_cmp_eq_u32 s63, 7
    s_cselect_b32 s22, s22, {OOB}
    s_cselect_b32 s17, -1, 0
    v_and_b32 v254, s17, v{TG}
    v_readfirstlane_b32 s26, v{TG}
    s_mov_b32 s21, 0xffff0000
    s_lshl_b32 s41, s38, 9
    s_add_u32 s32, s49, s41
    s_add_u32 s32, s32, 508
    s_add_u32 s33, s32, 2048
    s_and_b32 s41, s17, 4096
    s_add_u32 s34, s32, s41
    s_add_u32 s35, s33, s41
    v_mul_u32_u24 v20, {P_T}, v20
    v_lshl_add_u32 v21, v21, 3, v20
    v_add_u32 v21, {L_P}, v21
    s_and_b32 s41, s39, 1
    s_lshl_b32 s48, s50, 1
    s_add_u32 s48, s48, s41
    s_lshl_b32 s48, s48, 11
    s_add_u32 s48, s48, s49
    """)
    a("s_setprio 2")
    while pd[0] < 16: perm_pair()
    stamp(6)
    a("s_setprio 3")
    lwait(F_XS, 4, 10, extra='\n'.join(f"ds_read_b128 v[{XO+4*s_}:{XO+4*s_+3}], v{248 + s_}" for s_ in range(4)), sleep=1)
    stamp(10)
    if pd[0] == 16 and o['emajor']:
        side = []
        a("s_waitcnt lgkmcnt(0)")
        for e in range(4):
            for n_, (s_, ee) in enumerate([(s_, ee) for s_ in range(4) for ee in (e, e + 4)]):
                c = '0' if s_ == 0 else f"v[{ACC+4*ee}:{ACC+4*ee+3}]"
                a(f"v_mfma_f32_16x16x32_bf16 v[{ACC+4*ee}:{ACC+4*ee+3}], v[{OP[s_]+4*ee}:{OP[s_]+4*ee+3}], v[{XO+4*s_}:{XO+4*s_+3}], {c}")
                if n_ >= 3 and side: a(side.pop(0))
            side = [f"v_permlane32_swap_b32 v{ACC+4*e+i}, v{ACC+16+4*e+i}\nv_permlane32_swap_b32 v{ACC+4*e+i+1}, v{ACC+16+4*e+i+1}" for i in (0, 2)]
            side += ['\n'.join(f"v_add_f32_dpp v{ACC+4*e+j}, v{ACC+16+4*e+j}, v{ACC+4*e+j} row_ror:8 row_mask:0xf bank_mask:0xf" for j in (i, i + 1)) for i in (0, 2)]
            side += [f"ds_write_b128 v17, v[{ACC+4*e}:{ACC+4*e+3}] offset:{64*e}"]
        stamp(9)
        for x in side: a(x)
    else:
        for s_ in range(4):
            while pd[0] < 4 * (s_ + 1): perm_pair()
            a(f"s_waitcnt lgkmcnt({3 - s_})")
            for e in (0, 4, 1, 5, 2, 6, 3, 7):
                c = '0' if s_ == 0 else f"v[{ACC+4*e}:{ACC+4*e+3}]"
                a(f"v_mfma_f32_16x16x32_bf16 v[{ACC+4*e}:{ACC+4*e+3}], v[{OP[s_]+4*e}:{OP[s_]+4*e+3}], v[{XO+4*s_}:{XO+4*s_+3}], {c}")
        stamp(9)
        for e in range(4):
            for i in range(4): a(f"v_permlane32_swap_b32 v{ACC+4*e+i}, v{ACC+16+4*e+i}")
            for i in range(4): a(f"v_add_f32_dpp v{ACC+4*e+i}, v{ACC+16+4*e+i}, v{ACC+4*e+i} row_ror:8 row_mask:0xf bank_mask:0xf")
        for e in range(4): a(f"ds_write_b128 v17, v[{ACC+4*e}:{ACC+4*e+3}] offset:{64*e}")
    signal(F_P)
    PR = ACC + 16
    ex = '\n'.join(f"ds_read_b64 v[{PR+2*w}:{PR+2*w+1}], v21 offset:{P_W*w}" for w in range(4))
    lwait(F_P, 4, 10, extra=ex, sleep=0)
    for d, s_ in ((0, 1), (2, 3), (0, 2)):
        a(f"v_pk_add_f32 v[{PR+2*d}:{PR+2*d+1}], v[{PR+2*d}:{PR+2*d+1}], v[{PR+2*s_}:{PR+2*s_+1}]")
    a(f"v_cvt_pk_bf16_f32 v{TG-1}, v{PR}, v{PR+1}\nbuffer_store_dwordx2 v[{TG-1}:{TG}], v18, s[8:11], s48 offen sc1")
    stamp(3)
    a("s_cmp_lg_u32 s50, 0\ns_cbranch_scc1 L_MEND")
    H = 120; HU = 128
    if o['hhint']: spoll('\n'.join(f"s_load_dword s{28+k}, s[8:9], s{32+k} glc" for k in range(4)), (28, 29, 30, 31), 's26')
    if o['h2delay']: a(f"s_sleep {o['h2delay']}")
    gpoll(f"""buffer_load_dwordx2 v[{H}:{H+1}], v18, s[8:11], s49 offen sc1
    buffer_load_dwordx2 v[{H+2}:{H+3}], v18, s[8:11], s49 offen offset:2048 sc1
    buffer_load_dwordx2 v[{H+4}:{H+5}], v18, s[8:11], s22 offen sc1
    buffer_load_dwordx2 v[{H+6}:{H+7}], v18, s[8:11], s22 offen offset:2048 sc1""", [(H+1, f'v{TG}'), (H+3, f'v{TG}'), (H+5, 'v254'), (H+7, 'v254')], 10, 0, cnt='s63',
          mid='\n'.join(f"v_lshlrev_b32 v{HU+2*k}, 16, v{H+2*k}\nv_and_b32 v{HU+2*k+1}, s21, v{H+2*k}" for k in range(4)), between=lambda: signal(F_H2P))
    stamp(11)
    if o['stamps']: a("s_mov_b32 s90, s63")
    a(f"""
    v_pk_add_f32 v[{HU}:{HU+1}], v[{HU}:{HU+1}], v[{HU+4}:{HU+5}]
    v_pk_add_f32 v[{HU+2}:{HU+3}], v[{HU+2}:{HU+3}], v[{HU+6}:{HU+7}]
    v_mul_f32 v{HU+4}, 0xbfb8aa3b, v{HU}
    v_mul_f32 v{HU+5}, 0xbfb8aa3b, v{HU+1}
    v_exp_f32 v{HU+4}, v{HU+4}
    v_exp_f32 v{HU+5}, v{HU+5}
    v_pk_mul_f32 v[{HU}:{HU+1}], v[{HU}:{HU+1}], v[{HU+2}:{HU+3}]
    v_add_f32 v{HU+4}, 1.0, v{HU+4}
    v_add_f32 v{HU+5}, 1.0, v{HU+5}
    v_rcp_f32 v{HU+4}, v{HU+4}
    v_rcp_f32 v{HU+5}, v{HU+5}
    v_pk_mul_f32 v[{HU}:{HU+1}], v[{HU}:{HU+1}], v[{HU+4}:{HU+5}]
    v_cvt_pk_bf16_f32 v10, v{HU}, v{HU+1}
    ds_write_b32 v22, v10
    """)
    signal(F_H)
    a("L_FFN2:")
    w2_operands()
    ex = '\n'.join(f"ds_read_b128 v[{XO+4*s_}:{XO+4*s_+3}], v23 offset:{64*s_}" for s_ in range(2))
    lwait(F_H, 4, 10, extra=ex, sleep=o.get('hsleep', 0))
    for t in range(4):
        for s_ in range(2):
            c = '0' if s_ == 0 else f"v[{FB+4*t}:{FB+4*t+3}]"
            a(f"v_mfma_f32_16x16x32_bf16 v[{FB+4*t}:{FB+4*t+3}], v[{BC+16*s_+4*t}:{BC+16*s_+4*t+3}], v[{XO+4*s_}:{XO+4*s_+3}], {c}")
    a("s_mov_b64 exec, s[42:43]")
    for t in range(4):
        for e in range(3): a(f"v_perm_b32 v{FP+4*t+e}, v{FB+4*t+e}, v{FB+4*t+3}, s{18+e}")
        a(f"buffer_store_dwordx4 v[{FP+4*t}:{FP+4*t+3}], v19, s[8:11], s61 offen sc1")
        if t < 3: a(f"s_add_u32 s61, s61, {4*H3S}")
    if o['h3f']: a(f"s_mov_b64 exec, 0xff\nbuffer_store_dword v{TG}, v11, s[8:11], s60 offen sc1")
    stamp(12)
    a("L_MEND:")
    finish()
    a("L_AG:\ns_mov_b32 s21, 0xffff0000\nv_lshrrev_b32 v12, 4, v1")
    topk_prep()
    a(f"""
    v_and_b32 v4, 3, v1
    v_lshlrev_b32 v5, 3, v4
    v_lshlrev_b32 v6, 7, v1
    s_and_b32 s41, s39, 1
    s_lshl_b32 s41, s41, 2
    s_add_u32 s41, s41, s38
    s_lshl_b32 s19, s41, 13
    s_add_u32 s19, s19, {WS_SEL}
    v_mov_b32 v25, v{TG}
    v_mov_b32 v27, v{TG}
    """)
    if o['rdelay']: a(f"s_sleep {o['rdelay']}")
    gpoll(rt_loads, [(r, f'v{TG}') for r in (193, 195, 197, 199)], 10, o.get('rsleep', 2), mid=topk_keys)
    stamp(4)
    if o['stamps']: a("s_mov_b32 s92, s62")
    topk('G')
    a(f"""
    s_mov_b32 s62, 0
    L_AGW:
    ds_read_b32 v24, v5 offset:{L_SEL}
    ds_read_b32 v26, v5 offset:{L_SEL + 4}
    s_add_u32 s62, s62, 1
    s_waitcnt lgkmcnt(0)
    v_min_u32 v10, v24, v26
    v_cmp_eq_u32 vcc, 0, v10
    s_cbranch_vccz L_AGD
    s_cmp_lt_u32 s62, {SPIN * 64}
    s_cbranch_scc1 L_AGW
    L_AGD:
    buffer_store_dwordx4 v[24:27], v6, s[8:11], s19 offen sc1
    """)
    stamp(5)
    a(f"""
    s_cmp_lg_u32 s19, {WS_SEL}
    s_cbranch_scc1 L_MEND
    s_mov_b64 exec, 1
    buffer_store_dword v{TG}, off, s[8:11], 0 sc1
    s_branch L_MEND
    """)

    a(f"""
    L_S:
    s_mul_i32 s43, s3, {SCR_S}
    s_add_u32 s43, s43, {L_SCR}
    s_mul_i32 s44, s3, {UT_W}
    s_add_u32 s44, s44, {L_UT}
    s_mul_i32 s45, s3, {KA_S}
    s_add_u32 s45, s45, {L_KA}
    s_add_u32 s46, s43, {TAB_O}
    s_mov_b32 m0, s43
    s_mov_b32 s48, 0xffff0000
    """)
    a(f"""
    s_and_b32 s41, s3, 3
    s_lshl_b32 s49, s39, 2
    s_add_u32 s49, s49, s41
    s_lshl_b32 s49, s49, 12
    s_add_u32 s49, s49, {WS_KX}
    """)
    a(f"""
    v_mov_b32 v16, 0
    v_mov_b32 v17, 0
    v_mov_b32 v18, 0
    v_mov_b32 v19, 0
    v_lshl_add_u32 v14, v1, 3, s44
    v_lshl_add_u32 v15, v1, 4, s45
    s_mov_b32 exec_hi, 0x0fffffff
    ds_write_b64 v14, v[16:17]
    s_mov_b64 exec, -1
    """)
    for k in range(4): a(f"ds_write_b128 v15, v[16:19] offset:{1024*k}")
    a(f"""
    v_mov_b32 v29, 0x3f803f80
    ds_write_addtid_b32 v29
    ds_write_addtid_b32 v16 offset:256
    v_and_b32 v17, 15, v1                 ; j / n
    v_lshrrev_b32 v18, 4, v1              ; c / q
    v_mul_u32_u24 v19, {SCR_W}, v17
    v_lshl_add_u32 v19, v18, 4, v19
    v_add_u32 v19, s43, v19
    v_and_b32 v20, 31, v1
    v_lshrrev_b32 v21, 4, v20
    v_lshl_add_u32 v20, v21, 8, v20
    v_lshrrev_b32 v21, 5, v1
    v_mul_u32_u24 v21, {E0A - E1A}, v21
    v_lshl_add_u32 v20, v20, 2, v21
    v_add_u32 v20, s43, v20
    v_lshlrev_b32 v4, 5, v17
    v_lshl_add_u32 v4, v18, 4, v4
    v_add_u32 v4, s44, v4
    v_and_b32 v6, 3, v17
    v_mul_u32_u24 v6, 320, v6
    v_lshrrev_b32 v21, 2, v17
    v_sub_u32 v21, v18, v21
    v_lshl_add_u32 v6, v21, 4, v6
    v_add3_u32 v170, v6, 48, s45          ; K2/K3 base
    v_lshlrev_b32 v7, 5, v17
    v_lshl_add_u32 v7, v18, 3, v7
    s_add_u32 s41, s44, {UT_PAD}
    v_add_u32 v5, s41, v7
    v_lshlrev_b32 v6, 1, v7
    v_add_u32 v6, {L_G}, v6
    v_add_u32 v7, s43, v7
    v_and_b32 v21, 1, v17
    v_mul_u32_u24 v21, {E0A - E1A}, v21
    v_lshrrev_b32 v22, 1, v17
    v_lshl_add_u32 v21, v22, 2, v21
    v_lshlrev_b32 v22, 4, v18
    v_sub_u32 v21, v22, v21
    s_add_u32 s41, s43, {E0A + 28}
    v_add_u32 v162, s41, v21
    v_mov_b32 v21, 0x3000
    v_lshlrev_b32 v21, v17, v21
    v_lshlrev_b32 v22, 3, v18
    v_lshrrev_b32 v21, v22, v21
    s_mov_b32 s41, 0x10001
    """)
    for q in range(4):
        a(f"v_bfe_u32 v22, v21, {2*q}, 2\nv_lshl_or_b32 v22, v22, 15, v22\nv_and_b32 v22, s41, v22\nv_mul_u32_u24 v{164+q}, 0xffff, v22")
    a(f"""
    s_cmp_ge_u32 s3, 4
    s_cbranch_scc1 L_B
    v_lshlrev_b32 v25, 5, v17             ; tile0: (8n + 4(q&1) + 128(q>>1))*4
    v_and_b32 v26, 1, v18
    v_lshl_add_u32 v25, v26, 4, v25
    v_lshrrev_b32 v27, 1, v18
    v_lshl_add_u32 v25, v27, 9, v25
    v_add_u32 v25, s46, v25
    v_lshlrev_b32 v28, 4, v17
    v_lshl_add_u32 v28, v26, 8, v28
    v_add_u32 v28, {256*4}, v28
    v_lshlrev_b32 v29, 3, v17
    v_lshl_add_u32 v29, v26, 8, v29
    v_add_u32 v29, {384*4}, v29
    v_cmp_eq_u32 vcc, 1, v27
    v_mov_b32 v30, 8
    v_mov_b32 v31, 128
    v_cndmask_b32 v26, v28, v29, vcc
    v_cndmask_b32 v27, v30, v31, vcc
    v_add_u32 v26, s46, v26
    v_add_u32 v27, v26, v27
    v_lshlrev_b32 v28, 2, v17             ; tile2: (512 + n + 64q)*4 + 64*i
    v_lshl_add_u32 v28, v18, 8, v28
    v_add_u32 v28, s46, v28
    v_add_u32 v28, {512*4}, v28
    v_cmp_eq_u32 vcc, 0, v1
    s_waitcnt vmcnt(0)
    """)
    stamp(1); cstamp(8)
    A_, B_ = 32, 34
    W1, W2, W4, W8, W128 = 36, 40, 44, 48, 52
    BASE, CH0, T0, T1 = 56, 60, 64, 66
    BOP, AOP, KAC, PK = 68, 100, 132, 144
    a(f"""
    v_mul_f32 v12, {LOG2E}, v12
    v_lshlrev_b32 v32, 16, v8
    v_and_b32 v33, s48, v8
    v_exp_f32 v12, v12
    v_mul_f32 v32, {LOG2E}, v32
    v_mul_f32 v33, {LOG2E}, v33
    v_exp_f32 v32, v32
    v_exp_f32 v33, v33
    v_cvt_pk_bf16_f32 v12, v12, v12
    v_lshlrev_b32 v34, 16, v9
    v_and_b32 v35, s48, v9
    v_cvt_pk_bf16_f32 v8, v32, v33
    v_and_b32 v12, s48, v12               ; dt
    v_lshlrev_b32 v32, 16, v8
    v_and_b32 v33, s48, v8
    v_mul_f32 v34, v34, v12
    v_mul_f32 v35, v35, v12
    v_mul_f32 v32, v32, v12
    v_mul_f32 v33, v33, v12
    v_mul_f32 v34, 0.15915494, v34
    v_mul_f32 v35, 0.15915494, v35
    v_mul_f32 v32, 0xbfb8aa3b, v32
    v_mul_f32 v33, 0xbfb8aa3b, v33
    v_mul_f32 v12, -2.0, v12
    v_cndmask_b32 v13, 0, v13, vcc
    v_lshlrev_b32 v{BASE}, 16, v10
    v_and_b32 v{BASE+1}, s48, v10
    v_lshlrev_b32 v{BASE+2}, 16, v11
    v_and_b32 v{BASE+3}, s48, v11
    v_mul_f32 v{BASE}, v{BASE}, v12
    v_mul_f32 v{BASE+1}, v{BASE+1}, v12
    v_mul_f32 v{BASE+2}, v{BASE+2}, v12
    v_mul_f32 v{BASE+3}, v{BASE+3}, v12
    """)
    def direct(W, k, conj):
        lit = {1: None, 8: '0x41000000', 128: '0x43000000'}[k]
        ta, tb = (T0, T1) if lit else (A_, B_)
        if lit:
            for m in range(2): a(f"v_mul_f32 v{T0+m}, {lit}, v{A_+m}\nv_mul_f32 v{T1+m}, {lit}, v{B_+m}")
        for m in range(2): a(f"v_rndne_f32 v{W+m}, v{tb+m}\nv_exp_f32 v{T0+m}, v{ta+m}")
        for m in range(2):
            if conj: a(f"v_sub_f32 v{T1+m}, v{W+m}, v{tb+m}")
            else: a(f"v_sub_f32 v{T1+m}, v{tb+m}, v{W+m}")
        for m in range(2): a(f"v_cos_f32 v{W+m}, v{T1+m}\nv_sin_f32 v{W+2+m}, v{T1+m}")
        a(f"v_pk_mul_f32 v[{W}:{W+1}], v[{W}:{W+1}], v[{T0}:{T0+1}]\nv_pk_mul_f32 v[{W+2}:{W+3}], v[{W+2}:{W+3}], v[{T0}:{T0+1}]")
    def cmul(D, X, W):
        a(f"""
        v_pk_mul_f32 v[{T0}:{T0+1}], v[{X+2}:{X+3}], v[{W+2}:{W+3}]
        v_pk_mul_f32 v[{T1}:{T1+1}], v[{X+2}:{X+3}], v[{W}:{W+1}]
        v_pk_fma_f32 v[{D+2}:{D+3}], v[{X}:{X+1}], v[{W+2}:{W+3}], v[{T1}:{T1+1}]
        v_pk_fma_f32 v[{D}:{D+1}], v[{X}:{X+1}], v[{W}:{W+1}], v[{T0}:{T0+1}] neg_lo:[0,0,1] neg_hi:[0,0,1]
        """)
    batch = []
    def emit(X, row):
        p = PK + 2 * len(batch)
        a(f"v_cvt_pk_bf16_f32 v{p+1}, v{X+2}, v{X+3}\nv_cvt_pk_bf16_f32 v{p}, v{X}, v{X+1}")
        batch.append((p, row))
    def tile_mfma(t, nwait):
        a(f"s_waitcnt lgkmcnt({nwait})\n.p2align 3")
        for ks in range(8):
            c = '0' if ks == 0 else f"v[{KAC+4*t}:{KAC+4*t+3}]"
            a(f"v_mfma_f32_16x16x32_bf16 v[{KAC+4*t}:{KAC+4*t+3}], v[{AOP+4*ks}:{AOP+4*ks+3}], v[{BOP+4*ks}:{BOP+4*ks+3}], {c}")
    def flush():
        for p, row in batch:
            a(f"ds_write_addtid_b32 v{p} offset:{row*SCR_W}\nds_write_addtid_b32 v{p+1} offset:{row*SCR_W+256}")
        batch.clear()
    def reads(R):
        flush()
        for ks in range(8): a(f"ds_read_b128 v[{R+4*ks}:{R+4*ks+3}], v19 offset:{64*ks}")
    direct(W8, 8, True)
    a(".p2align 3")
    emit(W8, 1)
    cmul(CH0, W8, W8); emit(CH0, 2)
    for b in range(3, 16):
        cmul(CH0, CH0, W8); emit(CH0, b)
        if b == 7: flush()
    reads(BOP)
    stamp(3)
    direct(W1, 1, False)
    direct(W128, 128, False)
    a(".p2align 3")
    cmul(W2, W1, W1); cmul(W4, W2, W2)
    for j in range(2):
        if j: cmul(BASE, BASE, W128)
        emit(BASE, 8 * j)
        for i in range(1, 8):
            cmul(CH0, BASE if i == 1 else CH0, W1); emit(CH0, 8 * j + i)
        flush()
    reads(AOP)
    row = 0
    for j in range(2):
        cmul(BASE, BASE, W128); emit(BASE, row); row += 1
        for i in range(1, 4):
            cmul(CH0, BASE if i == 1 else CH0, W2); emit(CH0, row); row += 1
    def mfma_with_writes(t):
        a("s_waitcnt lgkmcnt(0)\n.p2align 3")
        wr = [x for p, row in batch for x in (f"ds_write_addtid_b32 v{p} offset:{row*SCR_W}", f"ds_write_addtid_b32 v{p+1} offset:{row*SCR_W+256}")]
        batch.clear()
        for ks in range(8):
            c = '0' if ks == 0 else f"v[{KAC+4*t}:{KAC+4*t+3}]"
            a(f"v_mfma_f32_16x16x32_bf16 v[{KAC+4*t}:{KAC+4*t+3}], v[{AOP+4*ks}:{AOP+4*ks+3}], v[{BOP+4*ks}:{BOP+4*ks+3}], {c}")
            a(wr.pop(0)); a(wr.pop(0))
        while wr: a(wr.pop(0))
    mfma_with_writes(0)
    for j in range(4):
        cmul(BASE, BASE, W128); emit(BASE, row); row += 1
        cmul(CH0, BASE, W4); emit(CH0, row); row += 1
    reads(AOP)
    if o['rpos'] == 0:
        a(f"""
        s_cmp_eq_u32 s47, 0
        s_cbranch_scc1 L_NRE
        s_lshl_b32 s41, s3, 11
        v_lshl_add_u32 v239, v1, 4, s41
        s_mov_b32 s25, {WS_RT}
        {rt_loads}
        L_NRE:
        .p2align 3
        """)
    for j in range(9):
        cmul(BASE, BASE, W128); emit(BASE, j)
    mfma_with_writes(1)
    reads(AOP)
    post_addr = f"""
        v_sub_u32 v32, 63, v1
        v_lshl_add_u32 v35, v32, 3, s43       ; arrays + 8*(63-i)
        s_add_u32 s41, s45, {K3A + 240 - 252}
        v_lshl_add_u32 v34, v32, 2, s41
        v_lshrrev_b32 v32, 1, v32
        v_and_b32 v33, 1, v1
        v_mul_u32_u24 v33, 1280, v33
        v_lshl_add_u32 v33, v32, 2, v33
        s_add_u32 s41, s45, {K2X + 52}
        v_add_u32 v33, s41, v33
    """
    def post_head():
        a(f"""
        v_lshl_add_u32 v30, v1, 3, s46
        v_lshl_add_u32 v31, v1, 4, s46
        v_sub_u32 v32, 63, v1
        v_lshl_add_u32 v35, v32, 3, s43       ; arrays + 8*(63-i)
        s_add_u32 s41, s45, {K3A + 240 - 252}
        v_lshl_add_u32 v34, v32, 2, s41
        v_lshrrev_b32 v32, 1, v32
        v_and_b32 v33, 1, v1
        v_mul_u32_u24 v33, 1280, v33
        v_lshl_add_u32 v33, v32, 2, v33
        s_add_u32 s41, s45, {K2X + 52}
        v_add_u32 v33, s41, v33
        v_mov_b32 v36, s46
        ds_write_b128 v25, v[{KAC}:{KAC+3}]
        ds_write_b64 v26, v[{KAC+4}:{KAC+5}]
        ds_write_b64 v27, v[{KAC+6}:{KAC+7}]
        ds_read_b128 v[40:43], v31
        ds_read_b32 v47, v31 offset:16
        ds_read_b64 v[44:45], v30 offset:{256*4}
        ds_read_b32 v46, v30 offset:{258*4}
        ds_write_b32 v20, v16
        """)
    KO = 56
    if o['rpos'] == 1:
        a(f"""
        s_cmp_eq_u32 s47, 0
        s_cbranch_scc1 L_NRE
        s_lshl_b32 s41, s3, 11
        v_lshl_add_u32 v239, v1, 4, s41
        s_mov_b32 s25, {WS_RT}
        {rt_loads}
        L_NRE:
        .p2align 3
        """)
    a(f"v_sub_f32 v{KAC}, v{KAC}, v13")
    post_head()
    tile_mfma(2, 8)
    stamp(4)
    a(f"""
    s_waitcnt lgkmcnt(0)
    v_cvt_pk_bf16_f32 v{KO}, v43, v42
    v_cvt_pk_bf16_f32 v{KO+1}, v41, v40
    v_cvt_pk_bf16_f32 v{KO+4}, v47, v43
    v_cvt_pk_bf16_f32 v{KO+5}, v42, v41
    v_cvt_pk_bf16_f32 v{KO+8}, v46, v45
    v_cvt_pk_bf16_f32 v{KO+9}, v44, v44
    v_cvt_pk_bf16_f32 v{KO+12}, v46, v46
    v_cvt_pk_bf16_f32 v{KO+13}, v45, v44
    ds_write2_b32 v28, v{KAC+8}, v{KAC+9} offset0:0 offset1:16
    ds_write2_b32 v28, v{KAC+10}, v{KAC+11} offset0:32 offset1:48
    ds_read_b32 v48, v30 offset:{385*4}
    ds_read_b32 v49, v30 offset:{386*4}
    ds_read_b32 v50, v30 offset:{513*4}
    ds_read_b32 v51, v30 offset:{514*4}
    ds_read_b32 v52, v36 offset:{512*4}
    s_cmp_eq_u32 s47, 0
    s_cbranch_scc1 L_A
    """)
    late3 = f"v_cvt_pk_bf16_f32 v{KO+2}, v48, v49\nv_cvt_pk_bf16_f32 v{KO+6}, v50, v51\nv_cvt_pk_bf16_f32 v{KO+10}, v52, v52"
    lwait(F_PUB, 4, 10, extra=f"ds_read_b32 v{TG}, v{vZ} offset:{L_TAG}", sleep=1)
    a(f"s_setprio 3\nv_lshlrev_b32 v8, 4, v1\ns_mov_b32 s21, 0xffff0000\n{late3}")
    for i in range(4): a(f"v_mov_b32 v{KO+4*i+3}, v{TG}")
    for i in range(4): a(f"buffer_store_dwordx4 v[{KO+4*i}:{KO+4*i+3}], v8, s[8:11], s49 offen offset:{1024*i} sc1")
    stamp(2); cstamp(9)
    if o['stamps']: a("s_sub_u32 s82, s82, s80")
    a(f"""
    s_mov_b32 s44, s34
    s_mov_b32 s45, s35
    {decode}
    s_cselect_b32 s17, -1, 0
    s_cmp_ge_u32 s39, 126
    s_cbranch_scc1 L_MEND
    s_cmp_eq_u32 s50, 0
    s_cselect_b32 s46, 7340032, 0
    s_mov_b32 s47, 0x20000
    s_lshl_b32 s53, s51, 17
    s_and_b32 s41, s39, 1
    s_lshl_b32 s41, s41, 10
    s_add_u32 s53, s53, s41
    s_lshl_b32 s41, s38, 11
    s_add_u32 s53, s53, s41
    s_mul_i32 s16, s38, {2*W2_G}
    s_add_u32 s16, s16, {L_W2}
    """)
    n2 = [0]
    def w2(n):
        for _ in range(min(n, 16 - n2[0])):
            k = n2[0]
            a(f"s_mov_b32 m0, s16\ns_add_u32 s16, s16, {W2_R if k != 7 else W2_G - 7*W2_R}\nbuffer_load_dwordx4 v8, s[44:47], s53 offen {wnt} lds")
            a(f"s_add_u32 s53, s53, {8*2048}" if k != 7 else f"s_sub_u32 s53, s53, {52*2048}")
            n2[0] += 1
    a(f"""
    v_readfirstlane_b32 s26, v{TG}
    s_lshl_b32 s19, s39, 9
    s_lshl_b32 s41, s38, 7
    s_add_u32 s19, s19, s41
    s_add_u32 s19, s19, {WS_SEL}
    s_mul_i32 s27, s38, {2*XS_W}
    s_add_u32 s27, s27, {L_XS}
    """)
    spoll("s_load_dwordx4 s[28:31], s[8:9], s19 glc", (29, 31), 's26', sleep=o.get('ssleep', 0))
    stamp(7)
    if o['stamps']: a("s_mov_b32 s92, s62")
    a(f"""
    s_and_b32 s32, s28, 2047
    s_and_b32 s33, s30, 2047
    s_lshl_b32 s32, s32, 11
    s_lshl_b32 s33, s33, 11
    s_mov_b32 m0, s27
    s_add_u32 s27, s27, {XS_W}
    buffer_load_dwordx4 v8, s[4:7], s32 offen lds
    buffer_load_dwordx4 v8, s[4:7], s32 offen offset:1024 lds
    s_mov_b32 m0, s27
    s_setprio 1
    buffer_load_dwordx4 v8, s[4:7], s33 offen lds
    buffer_load_dwordx4 v8, s[4:7], s33 offen offset:1024 lds
    """)
    signal(F_KA)
    a(ffn2_prep)
    lwait(F_KA, 8, 10, sleep=1)
    w2(o['nD0'])
    a(f"s_waitcnt vmcnt({o['nD0']})")
    signal(F_XS)
    stamp(5)
    a("s_cmp_lg_u32 s50, 0\ns_cbranch_scc1 L_MEND")
    w2(o['nD'] - o['nD0'])
    if o['nD'] < 16:
        lwait(F_H2P, 4, 10, sleep=1)
        w2(16)
    a("s_waitcnt vmcnt(0)"); signal(F_W2); stamp(11)
    a("s_branch L_FFN2")

    a(f"""
    L_B:
    v_and_b32 v168, 255, v0
    v_lshlrev_b32 v169, 14, v168
    s_lshl_b32 s41, s39, 4
    v_add_u32 v169, s41, v169
    s_mov_b32 s24, 0x07c03800
    s_mov_b32 s25, 0x0fe00038
    s_lshl_b32 s41, s38, 4
    s_lshr_b64 s[24:25], s[24:25], s41
    s_and_b32 s24, s24, 0xffff
    s_mov_b32 s25, 0x1ff0
    s_mov_b32 s26, 0x10001
    s_lshl_b32 s41, s38, 10
    s_add_u32 s41, s41, {L_CB}
    v_lshlrev_b32 v12, 3, v18
    v_add_u32 v14, s41, v8
    v_add_u32 v15, {L_CB + 4096}, v8
    """)
    for k in range(2):
        a(f"v_lshlrev_b32 v10, v17, s{24+k}\nv_lshrrev_b32 v10, v12, v10")
        for q in range(4):
            a(f"v_bfe_u32 v11, v10, {2*q}, 2\nv_lshl_or_b32 v11, v11, 15, v11\nv_and_b32 v11, s26, v11\nv_mul_u32_u24 v{80+q}, 0x3f80, v11")
        a(f"ds_write_b128 v{14+k}, v[80:83]")
    a(f"""
    v_lshlrev_b32 v171, 4, v168
    v_add_u32 v171, {L_UT + UT_PAD}, v171
    s_lshl_b32 s41, s38, 11
    v_add_u32 v172, s41, v8
    v_add_u32 v173, {L_G}, v172
    s_mov_b32 s22, 0x05040100
    s_mov_b32 s23, 0x07060302
    s_mov_b32 s26, {WS_GT}
    """)
    if o['r16']: rows_dots16(RW, 96, 240)
    else: rows_dots(RW, 240, 1, 'B')
    lwait(F_PUB, 5, 10, sleep=1)
    stamp(7)
    if not o['nearly']: a("s_cmp_eq_u32 s41, 3\ns_cbranch_scc1 L_MW\ns_waitcnt vmcnt(0)\nL_MW:\ns_waitcnt vmcnt(1)")
    if o['two']:
        a("s_cmp_lt_u32 s38, 2\ns_cbranch_scc1 L_C1")
        lwait(F_COL2, 2, 10, sleep=1)
        a("L_C1:")
    for j in range(o['nearly'], 8):
        L = a.lab('U'); a(f"s_cmp_eq_u32 s19, {j}\ns_cbranch_scc1 {L}"); uload(j); a(f"{L}:")
    signal(F_COL)
    lwait(F_COL, 2 if o['two'] else 4, 10, sleep=1)
    def transpose():
        if o['two']: signal(F_COL2)
        a("s_waitcnt vmcnt(2)")
        stamp(12)
        for d in range(8):
            for p in range(4):
                a(f"v_perm_b32 v{UO+4*d+p}, v{UR+8*p+4+(d>>1)}, v{UR+8*p+(d>>1)}, s{22+(d&1)}")
            if d % 2:
                for dd in (d - 1, d): a(f"ds_write_b128 v171, v[{UO+4*dd}:{UO+4*dd+3}] offset:{dd*UT_W}")
    gpoll("buffer_load_dwordx4 v[32:35], v172, s[8:11], s26 offen sc1\nbuffer_load_dwordx4 v[36:39], v172, s[8:11], s26 offen offset:1024 sc1",
          [(r, f'v{TG}') for r in (33, 35, 37, 39)], 10, 4, between=transpose,
          mid='\n'.join(f"v_lshlrev_b32 v{48+2*k}, 16, v{32+2*k}\nv_and_b32 v{49+2*k}, s48, v{32+2*k}" for k in range(4)))
    if o['stamps']: a("s_mov_b32 s90, s62")
    a("ds_write_b128 v173, v[48:51]\nds_write_b128 v173, v[52:55] offset:1024")
    if o['two']:
        a(f"s_lshr_b32 s41, s38, 1\ns_mul_i32 s41, s41, {F_UT2 - F_UT}\nv_mov_b32 v10, s41\ns_mov_b64 exec, 1\nds_add_u32 v10, v{vOne} offset:{F_UT}\ns_mov_b64 exec, -1")
    else: signal(F_UT)
    if o['pf1'] or o['pf2']:
        dec = decode
        for x, y in (('s39', 's24'), ('s51', 's25'), ('s50', 's27'), ('s63', 's36'), ('s43', 's37')): dec = dec.replace(x, y)
        a(f"""
        {dec}
        s_cselect_b32 s54, 0, 7340032
        s_mov_b32 s55, 0x20000
        s_bitcmp1_b32 s24, 0
        s_cselect_b32 s52, s32, s30
        s_cselect_b32 s53, s33, s31
        s_mul_i32 s41, s38, {256*7168}
        s_lshl_b32 s42, s25, 7
        s_add_u32 s36, s41, s42
        s_add_u32 s37, s36, {128*7168}
        s_add_u32 s36, s36, {192*7168}
        v_mul_u32_u24 v76, 7168, v1
        s_mov_b32 s56, s34
        s_mov_b32 s57, s35
        s_cmp_eq_u32 s27, 0
        s_cselect_b32 s58, 7340032, 0
        s_mov_b32 s59, 0x20000
        s_lshl_b32 s27, s25, 17
        s_and_b32 s24, s24, 1
        s_lshl_b32 s24, s24, 10
        s_add_u32 s27, s27, s24
        v_lshrrev_b32 v77, 2, v168
        v_lshlrev_b32 v77, 11, v77
        v_and_b32 v78, 3, v168
        v_lshl_add_u32 v77, v78, 7, v77
        """)
        lwait(F_COL2, 4, 10, sleep=1)
    tw2 = "buffer_load_dword v0, v77, s[56:59], s27 offen\nbuffer_load_dword v0, v77, s[56:59], s27 offen offset:512"
    if o['pf1'] >= 1: a("buffer_load_dword v0, v76, s[52:55], s36 offen")
    if o['pf1'] >= 2: a("buffer_load_dword v0, v76, s[52:55], s37 offen")
    if o['pf2'] == 2: a(tw2)
    a(f"s_setprio {o['pprio']}")
    if o['kdelay']: a(f"s_sleep {o['kdelay']}")
    if o['khint']:
        a(f"v_readfirstlane_b32 s26, v{TG}\ns_add_u32 s27, s49, 4092")
        spoll("s_load_dword s28, s[8:9], s27 glc", (28,), 's26', sleep=1)
    def bwin():
        a(post_addr); a("ds_write_b32 v20, v16")
    gpoll('\n'.join(f"buffer_load_dwordx4 v[{KO+4*i}:{KO+4*i+3}], v8, s[8:11], s49 offen offset:{1024*i} sc1" for i in range(4)),
          [(KO + 4 * i + 3, f'v{TG}') for i in range(4)], 12, 4, between=bwin)
    stamp(3); cstamp(8)
    if o['stamps']: a("s_mov_b32 s92, s62")
    if o['pf2'] == 1: a(tw2)
    a(f"""
    L_A:
    v_and_b32 v72, s48, v{KO+12}
    v_lshrrev_b32 v73, 16, v{KO+1}
    v_add_u32 v163, 512, v162
    ds_write_b64 v35, v[{KO}:{KO+1}] offset:{E1A + 576}
    ds_write_b64 v35, v[{KO+4}:{KO+5}] offset:{E0A + 572}
    ds_write_b64 v35, v[{KO+8}:{KO+9}] offset:{E1A + 64}
    ds_write_b64 v35, v[{KO+12}:{KO+13}] offset:{E0A + 60}
    s_mov_b64 exec, 1
    ds_write_b32 v35, v73 offset:{E0A + 1084 - 504}
    s_mov_b32 exec_lo, 0
    s_brev_b32 exec_hi, 1
    ds_write2_b32 v35, v72, v{KO+12} offset0:{(E1A + 56) // 4} offset1:{(E1A + 60) // 4}
    ds_write_b32 v35, v{KO+12} offset:{E0A + 56}
    s_mov_b64 exec, -1
    s_cmp_ge_u32 s3, 4
    s_cbranch_scc1 L_P2
    s_waitcnt lgkmcnt(7)
    {late3}
    L_P2:
    ds_write2_b32 v33, v{KO+2}, v{KO+2} offset0:0 offset1:81
    ds_write2_b32 v33, v{KO+2}, v{KO+2} offset0:162 offset1:243
    ds_write2_b32 v34, v{KO+6}, v{KO+6} offset0:0 offset1:81
    ds_write2_b32 v34, v{KO+6}, v{KO+6} offset0:162 offset1:243
    """)
    AF, A33, AFIX, RK2, RK3, RC, SL0 = 12, 76, 80, 84, 108, 124, 144
    for q in range(4): a(f"v_and_b32 v{AFIX+q}, v{KO+10}, v{164+q}")
    a(f"s_lshl_b32 s41, s3, 2\nv_mov_b32 v8, s41\nv_lshlrev_b32 v9, 4, v1\nv_add_u32 v9, {L_CB}, v9")
    res = {}
    for k in range(17):
        de = 2 * k + 1; off = 264 - 8 * de; r = AF + 4 * k
        v, off = (163, off - 128) if off >= 128 else (162, off)
        a(f"ds_read2_b32 v[{r}:{r+1}], v{v} offset0:{off} offset1:{off+1}\nds_read2_b32 v[{r+2}:{r+3}], v{v} offset0:{off+2} offset1:{off+3}")
    a("v_mov_b32 v11, v170")
    for al in (2, 3, 4):
        for h in range(2):
            r = RK2 + 8 * (al - 2) + 4 * h; res[r] = [f"ds_read_b128 v[{r}:{r+3}], v11 offset:{(K2Y if h else K2X) + 4 * (64 - 16 * al)}"]
    for al in range(4, 8):
        r = RK3 + 4 * (al - 4); res[r] = [f"ds_read_b128 v[{r}:{r+3}], v11 offset:{K3A + 4 * (112 - 16 * al)}"]
    for k in range(5): res[RC + 4 * k] = [f"ds_read_b128 v[{RC+4*k}:{RC+4*k+3}], v9 offset:{1024*k}"]
    if not o['lazy']:
        lwait(F_PUB, 4, 10, sleep=1)
        for r in res: a(res[r][0])
        res = {}
    stamp(2); cstamp(9)
    lwait(F_UT, 2 if o['two'] else 4, 10, sleep=1)
    a(f"s_cmp_lt_u32 s3, 4\ns_cbranch_scc1 L_CP\ns_setprio 0\nL_CP:")
    stamp(5); cstamp(10)
    info = conv3_stream(a, 4, 5, 6, 7, 8, vOne, sig, UT_PAD, AF, A33, AFIX, RK2, RK3, RC, SL0, 28, 's48', lead=o['lead'], look=o['look'], epilag=o['epilag'], wbatch=o['wbatch'], lazy_res=res, gate=(4, F_UT2, 2, vZ, 10, SPIN * 64) if o['two'] else None)
    if kw.get('verbose'): print(info, LDS_BYTES)
    stamp(6); cstamp(11)
    if o['stamps']: a("s_sub_u32 s82, s82, s80\ns_sub_u32 s86, s86, s84")
    a("s_cmp_ge_u32 s3, 4\ns_cbranch_scc1 L_EEND")

    a(f"""
    s_setprio {o['oprio']}
    ds_read_b32 v49, v{vZ} offset:{L_TAG}
    v_and_b32 v12, 7, v1
    v_lshrrev_b32 v13, 1, v12
    v_mul_u32_u24 v13, 112, v13
    v_lshl_add_u32 v13, v12, 3, v13
    s_and_b32 s41, s2, 7
    s_lshl_b32 s24, s40, 3
    s_add_u32 s24, s24, s41
    s_lshl_b32 s25, s39, 9
    s_lshl_b32 s24, s24, 9
    s_add_u32 s24, s24, {WS_SEL}
    """)
    def oprep():
        a(f"""
        v_lshlrev_b32 v8, 4, v1
        v_lshlrev_b32 v12, 2, v12
        v_bfe_u32 v10, v1, 2, 2
        v_lshrrev_b32 v11, 4, v1
        v_and_b32 v50, 3, v1
        v_lshlrev_b32 v51, 5, v11
        v_lshl_add_u32 v51, v50, 3, v51
        v_mul_u32_u24 v54, {SCR_S}, v10
        s_lshl_b32 s41, s38, 7
        s_add_u32 s41, s41, {L_SCR}
        v_add3_u32 v54, v54, v51, s41
        v_lshlrev_b32 v58, 11, v0
        s_lshl_b32 s41, s39, 4
        v_add_u32 v58, s41, v58
        v_lshrrev_b32 v17, 1, v11
        v_and_b32 v18, 1, v11
        v_lshl_or_b32 v17, v18, 1, v17
        s_lshl_b32 s41, s38, 2
        v_add_u32 v17, s41, v17
        s_lshl_b32 s44, s39, 1
        s_add_u32 s44, s44, s38
        s_mul_i32 s44, s44, {H3S}
        s_add_u32 s44, s44, {WS_H3}
        s_cmp_lt_u32 s38, 2
        s_cselect_b32 s44, s44, {OOB}
        s_add_u32 s45, s44, 4096
        s_mov_b32 s46, 0x0c04000c
        s_mov_b32 s47, 0x04020100
        s_brev_b32 s50, 1
        s_waitcnt lgkmcnt(0)
        """)
    gpoll("buffer_load_dwordx2 v[34:35], v13, s[8:11], s24 offen sc1",
          [(35, 'v49')], 28, 8, between=oprep)
    stamp(7)
    a(f"""
    v_and_b32 v21, 2047, v34
    v_and_b32 v38, 0xfc, v21
    v_and_b32 v37, 3, v21
    v_lshrrev_b32 v39, 8, v21
    v_lshl_add_u32 v37, v37, 3, v39
    v_lshlrev_b32 v39, v37, v{vOne}
    s_mov_b64 exec, 0xff
    ds_or_b32 v38, v39 offset:{L_MK}
    s_mov_b64 exec, -1
    ds_read_u8 v59, v0 offset:{L_MK}
    v_lshlrev_b32 v22, 2, v21
    v_add_u32 v22, {L_G}, v22
    ds_read_b32 v6, v22
    v_ashrrev_i32 v22, 31, v34
    v_not_b32 v22, v22
    v_or_b32 v22, 0x80000000, v22
    v_xor_b32 v20, v34, v22
    v_and_b32 v20, s48, v20
    v_mul_f32 v20, 0xbfb8aa3b, v20
    v_exp_f32 v20, v20
    v_mul_u32_u24 v23, {SCR_S}, v17
    v_add_f32 v20, 1.0, v20
    v_rcp_f32 v20, v20
    v_lshl_add_u32 v23, v21, 1, v23
    v_lshlrev_b32 v21, 11, v21
    v_lshl_add_u32 v21, v17, 1, v21
    s_lshl_b32 s41, s39, 4
    v_add_u32 v21, s41, v21
    v_mov_b32 v4, 0
    s_waitcnt lgkmcnt(0)
    v_fma_f32 v20, -v6, v20, v20          ; (1-g)*sigmoid(r)
    """)
    Y = 64; YR = [64 + 4 * k for k in range(7)]
    h3loads = '\n'.join(f"buffer_load_dwordx4 v[{YR[k]}:{YR[k]+3}], v8, s[8:11], {'s44' if k < 4 else 's45'} offen offset:{1024*(k%4)} sc1" for k in range(7))
    def h3_stage(nst):
        if o['h3f']:
            a(f"v_readfirstlane_b32 s33, v49\ns_lshl_b32 s41, s38, 7\ns_add_u32 s32, s25, s41\ns_add_u32 s32, s32, {WS_FL}")
            spoll("s_load_dwordx16 s[16:31], s[8:9], s32 glc", tuple(range(16, 30)), 's33')
            signal(F_XS)
            a("s_cmp_ge_u32 s38, 2\ns_cbranch_scc1 L_H3X")
            lwait(F_XS, 4, 10, sleep=0)
            stamp(8)
            a(h3loads); nst = 0
        a(f"""
        s_cmp_ge_u32 s38, 2
        s_cbranch_scc1 L_H3X
        s_mov_b32 s63, 0
        s_waitcnt vmcnt({nst})
        s_branch L_H3C
        L_H3:
        """)
        for k, ld in enumerate(h3loads.split('\n')):
            a(f"s_mov_b64 exec, s[{16+2*k}:{17+2*k}]\ns_cbranch_execz L_H3S{k}\n{ld}\nL_H3S{k}:")
        a("s_mov_b64 exec, -1\ns_waitcnt vmcnt(0)\nL_H3C:\ns_add_u32 s63, s63, 1")
        for k in range(7): a(f"v_cmp_ne_u32 s[{16+2*k}:{17+2*k}], v{YR[k]+3}, v49")
        Z = 128
        for k in range(7):
            r = YR[k]
            a(f"v_perm_b32 v{Z+k}, v{r+1}, v{r}, s46\nv_perm_b32 v{Z+k}, v{r+2}, v{Z+k}, s47")
        a("s_or_b64 s[30:31], s[16:17], s[18:19]")
        for k in range(2, 7): a(f"s_or_b64 s[30:31], s[30:31], s[{16+2*k}:{17+2*k}]")
        a(f"""
        s_cbranch_scc0 L_H3D
        s_sleep {o['h3sleep']}
        s_cmp_lt_u32 s63, {SPIN}
        s_cbranch_scc1 L_H3
        L_H3D:
        v_mov_b32 v{Y+3}, v{Z}
        """)
        for k in range(1, 7):
            r = YR[k]
            if o['h3pre']: a('\n'.join(f"v_add_f32 v{Y+q}, v{Y+q}, v{r+q}" for q in range(2)))
            else: a(f"v_pk_add_f32 v[{Y}:{Y+1}], v[{Y}:{Y+1}], v[{r}:{r+1}]")
            a(f"v_add_f32 v{Y+2}, v{Y+2}, v{r+2}\nv_add_f32 v{Y+3}, v{Y+3}, v{Z+k}")
        stamp(13)
        if o['stamps']: a("s_mov_b32 s92, s63")
        a(f"""
        v_permlane32_swap_b32 v{Y}, v{Y+1}
        v_permlane32_swap_b32 v{Y+2}, v{Y+3}
        v_add_f32 v{Y}, v{Y}, v{Y+1}
        v_add_f32 v{Y+2}, v{Y+2}, v{Y+3}
        s_mov_b32 s42, 0x00ff00ff
        s_mov_b32 s43, 0x00ff00ff
        v_permlane16_swap_b32 v{Y}, v{Y+2}
        v_add_f32 v{Y}, v{Y}, v{Y+2}
        v_add_f32_dpp v{Y}, v{Y}, v{Y} row_ror:8 row_mask:0xf bank_mask:0xf
        L_H3X:
        """)
    for gi, g in enumerate(groups):
        if o['h3pre'] and g[-1] == 7: h3_stage(g[0] - 1 - o['h3at'])
        AR = 96 + 16 * (gi & 1)
        for k, t in enumerate(g): a(f"v_lshlrev_b32 v{AR+8+k}, {31-t}, v59\nv_and_or_b32 v{AR+8+k}, v{AR+8+k}, s50, v58")
        rd = ''.join(f"ds_read_b64_tr_b16 v[{AR+4*k}:{AR+4*k+1}], v54 offset:{512*t}\nds_read_b64_tr_b16 v[{AR+4*k+2}:{AR+4*k+3}], v54 offset:{512*t + 4*SCR_S}\n" for k, t in enumerate(g))
        lastg = g[-1] == 7
        if lastg: rd += f"ds_read_u16_d16_hi v4, v23 offset:{L_SCR}\n"
        L = a.lab('T'); D = a.lab('TD')
        a(f"""
        s_mov_b32 s62, 0
        {L}:
        ds_read_b32 v10, v12 offset:{sig[g[-1]]}
        {rd if lastg else ''}
        s_add_u32 s62, s62, 1
        s_waitcnt lgkmcnt(0)
        v_cmp_eq_u32 vcc, 0, v10
        s_cbranch_vccz {D}
        s_sleep {1 if lastg else o['esleep']}
        s_cmp_lt_u32 s62, {SPIN * 64}
        s_cbranch_scc1 {L}
        {D}:
        """)
        if not lastg: a(rd + "s_waitcnt lgkmcnt(0)")
        for k, t in enumerate(g):
            a(f"s_mov_b32 s41, {t * 256 * 2048}\nbuffer_store_dwordx4 v[{AR+4*k}:{AR+4*k+3}], v{AR+8+k}, s[12:15], s41 offen")
            if t == o['h3at'] and not o['h3f']: a(h3loads)
    stamp(12)
    if not o['h3pre']: h3_stage(7 - o['h3at'])
    a(f"""
    s_cmp_ge_u32 s38, 2
    s_cbranch_scc1 L_EEND
    v_fma_f32 v4, v{Y}, v20, v4
    v_cvt_pk_bf16_f32 v4, v4, v4
    s_mov_b64 exec, s[42:43]
    buffer_store_short v4, v21, s[12:15], 0 offen
    L_EEND:
    """)
    if o['stamps']:
        a("L_FIN:\ns_mov_b64 exec, -1\ns_waitcnt vmcnt(0) lgkmcnt(0)")
        stamp(15)
        for i in range(16): a(f"v_writelane_b32 v4, s{64+2*i}, {i}")
        a(f"""
        s_mul_i32 s40, s2, 12
        s_add_u32 s40, s40, s3
        s_lshl_b32 s40, s40, 6
        s_add_u32 s40, s40, {WS_ST}
        v_lshlrev_b32 v5, 2, v1
        s_mov_b64 exec, 0xffff
        buffer_store_dword v4, v5, s[8:11], s40 offen
        """)
    a("L_END:\ns_endpgm")
    lines = hazard.fix(a.l, verbose=kw.get('verbose', False))
    k = kernel_text(KNAME, '\n'.join(lines) + '\n', 256, sgpr=102)
    return file_text([f'@launch grid=(256,1,1) block=(512,1,1) lds={LDS_BYTES}'], [k])

if __name__ == '__main__':
    out = sys.argv[1]
    kw = {}
    for x in sys.argv[2:]:
        k, v = x.split('=', 1); kw[k] = eval(v)
    open(out, 'w').write(gen(**kw))
```
